```python
import torch

def _softmax(x, axis=-1):
    return torch.softmax(x, dim=axis)
def _gelu(x):
    return torch.nn.functional.gelu(x, approximate="tanh")
def _silu(x):
    return torch.nn.functional.silu(x)
def _sigmoid(x):
    return torch.sigmoid(x)
def _layernorm(x, axis=-1, eps=1e-5):
    m = x.mean(dim=axis, keepdim=True)
    v = x.var(dim=axis, keepdim=True, unbiased=False)
    return (x - m) / torch.sqrt(v + eps)
def _scatter_add(tgt, idx, src, axis=0):
    return tgt.clone().index_add_(axis, idx, src)
def _segment_sum(src, seg, n):
    out = torch.zeros((n,) + src.shape[1:], dtype=src.dtype)
    return out.index_add_(0, seg, src)
def _pad(x, pw):
    flat = tuple(v for pair in reversed(pw) for v in pair)
    return torch.nn.functional.pad(x, flat)

kernel_name = 'standalone__softmax_full_bidir__sampling'

def setup_inputs():

    _w = (lambda a: (lambda t: t.to(torch.bfloat16) if t.is_floating_point() else t)(torch.as_tensor(a)))
    B, H, Sq, Skv, Dh = 8, 16, 4, 8192, 256
    return {
        "q": _w((lambda *s: torch.randn(*s, dtype=torch.bfloat16) * 0.8)(B, H, Sq, Dh)),
        "k": _w((lambda *s: torch.randn(*s, dtype=torch.bfloat16) * 0.8)(B, H, Skv, Dh)),
        "v": _w((lambda *s: torch.randn(*s, dtype=torch.bfloat16) * 0.05)(B, H, Skv, Dh)),
    }

def reference(q, k, v):
    scale = q.shape[-1] ** -0.5
    scores = torch.einsum('bhqd,bhkd->bhqk', q, k) * scale
    attn = _softmax(scores, axis=-1)
    return torch.einsum('bhqk,bhkd->bhqd', attn, v)
```

```python
import sys, math

KNAME = "standalone__softmax_full_bidir__sampling_kernel"
HEADER = """; Kernarg layout for this problem (48 bytes, ptrs only, base s[0:1]):
"""
C_SCALE = 0x3DB8AA3B

def kd(name, nv, ns):
    nv4 = (nv + 3) // 4 * 4
    return f""".section .rodata,"a"
.p2align 6
.amdhsa_kernel {name}
  .amdhsa_next_free_vgpr {nv4}
  .amdhsa_next_free_sgpr {ns}
  .amdhsa_accum_offset {nv4}
  .amdhsa_group_segment_fixed_size 0
  .amdhsa_kernarg_size 48
  .amdhsa_user_sgpr_count 2
  .amdhsa_user_sgpr_kernarg_segment_ptr 1
  .amdhsa_system_sgpr_workgroup_id_x 1
  .amdhsa_float_denorm_mode_32 3
.end_amdhsa_kernel
"""

def gen(nw=4, depth=5, flags='nt', mode='two', stamps=0, dpat=''):
    L = []; a = L.append
    NWG = 256
    G = 1024 // nw
    N = 4 * G
    dmax = depth + (1 if dpat else 0)
    U = (dmax + 2 + 3) // 4
    while G % U: U += 1
    GSTR = nw * 2048
    QSTR = 1040
    WSTR = 4 * QSTR
    ML = nw * WSTR
    lds = ML + nw * 32
    vK, vV, vM0, vM1 = 1, 2, 3, 4
    vm, vmc, vl, vs, vt0, vt1, vp = 5, 6, 7, 8, 9, 10, 11
    vX = 12
    vS = 16
    vQ = 20
    vA = 28
    vR = 44
    nv = vR + U * 16
    def slot(n): return vR + (n % (4 * U)) * 4
    def r4(b): return f"v[{b}:{b+3}]"
    def r2(b): return f"v[{b}:{b+1}]"

    if mode == 'two':
        a(f"; @launch kernel={KNAME} grid=({NWG},1,1) block=({nw*64},1,1) lds={lds}")
        a(f"; @launch kernel=combine_kernel grid=(128,1,1) block=(256,1,1) lds=0")
    else:
        a(f"; @launch grid=({NWG},1,1) block=({nw*64},1,1) lds={lds}")
    a('.amdgcn_target "amdgcn-amd-amdhsa--gfx950"')
    a(".text")
    a(f".globl {KNAME}")
    a(".p2align 8")
    a(f".type {KNAME},@function")
    a(f"{KNAME}:")
    a(f"  s_cmp_ge_u32 s2, {NWG}")
    a("  s_cbranch_scc1 L_done")
    a("  s_load_dwordx4 s[4:7], s[0:1], 0       ; q, k")
    a("  s_load_dwordx4 s[8:11], s[0:1], 16     ; v, out")
    a("  s_load_dwordx4 s[12:15], s[0:1], 32")
    if stamps:
        a("  s_memrealtime s[40:41]")
    a("  v_lshrrev_b32 v5, 6, v0")
    a("  v_and_b32 v0, 63, v0                   ; lane")
    a("  v_readfirstlane_b32 s3, v5             ; wave")
    a(f"  v_bfe_u32 v{vK}, v0, 2, 2")
    a(f"  v_lshlrev_b32 v{vK}, 9, v{vK}")
    a("  v_lshrrev_b32 v5, 4, v0")
    a(f"  v_lshl_add_u32 v{vK}, v5, 6, v{vK}")
    a("  v_and_b32 v6, 3, v0")
    a(f"  v_lshl_add_u32 v{vK}, v6, 4, v{vK}")
    a(f"  v_and_b32 v{vV}, 15, v0")
    a(f"  v_lshlrev_b32 v{vV}, 4, v{vV}")
    a(f"  v_lshl_add_u32 v{vV}, v5, 9, v{vV}")
    a("  s_lshl_b32 s28, s2, 21")
    a("  s_lshr_b32 s29, s2, 11")
    a("  s_lshr_b32 s30, s2, 1")
    a("  s_lshl_b32 s30, s30, 11")
    a("  s_lshl_b32 s24, s3, 11")
    a("  s_mov_b32 s18, 0x200000")
    a("  s_mov_b32 s19, 0x20000")
    a("  s_mov_b32 s22, 0x200000")
    a("  s_mov_b32 s23, 0x20000")
    a("  s_mov_b32 s34, 2048")
    a("  s_mov_b32 s35, 0x20000")
    a("  s_waitcnt lgkmcnt(0)")
    a("  s_add_u32 s32, s4, s30")
    a("  s_addc_u32 s33, s5, 0")
    a("  s_and_b32 s33, s33, 0xffff")
    a("  s_add_u32 s16, s6, s28")
    a("  s_addc_u32 s17, s7, s29")
    a("  s_and_b32 s17, s17, 0xffff")
    a("  s_add_u32 s20, s8, s28")
    a("  s_addc_u32 s21, s9, s29")
    a("  s_and_b32 s21, s21, 0xffff")
    a(f"  buffer_load_dwordx4 {r4(vQ)}, v{vK}, s[32:35], 0 offen")
    a(f"  buffer_load_dwordx4 {r4(vQ+4)}, v{vK}, s[32:35], 0 offen offset:256")

    rare = []
    def issue(n):
        t = n % 4
        if t == 0 and n > 0:
            a(f"  s_add_u32 s24, s24, {GSTR}")
        srd, vo = ("s[16:19]", vK) if t < 2 else ("s[20:23]", vV)
        off = f" offset:256" if t & 1 else ""
        a(f"  buffer_load_dwordx4 {r4(slot(n))}, v{vo}, {srd}, s24 offen{off} {flags}")
    def pv(n, h):
        b = slot(n)
        for half in range(2):
            acc = vA + h * 8 + half * 4
            a(f"  v_mfma_f32_16x16x16_bf16 {r4(acc)}, {r2(b + 2*half)}, {r2(vX)}, {r4(acc)}")
    def compute(x, tag):
        if x < 0: return
        t = x % 4
        if t == 0:
            if x < N:
                a(f"  v_mfma_f32_16x16x32_bf16 {r4(vS)}, {r4(slot(x))}, {r4(vQ)}, 0")
            if x > 0:
                pv(x - 1, 1)
        elif t == 1:
            a(f"  v_mfma_f32_16x16x32_bf16 {r4(vS)}, {r4(slot(x))}, {r4(vQ+4)}, {r4(vS)}")
        elif t == 2:
            a("  s_nop 6")
            dp = "row_mask:0xf bank_mask:0xf"
            a(f"  v_mov_b32_dpp v{vt0}, v{vS} quad_perm:[0,0,0,0] {dp}")
            a(f"  v_mov_b32_dpp v{vt1}, v{vS+2} quad_perm:[2,2,2,2] {dp}")
            a("  s_nop 0")
            a(f"  v_add_f32_dpp v{vt0}, v{vS+1}, v{vt0} quad_perm:[1,1,1,1] {dp}")
            a(f"  v_add_f32_dpp v{vt1}, v{vS+3}, v{vt1} quad_perm:[3,3,3,3] {dp}")
            a(f"  v_add_f32 v{vs}, v{vt0}, v{vt1}")
            a(f"  v_cmp_gt_f32 vcc, v{vs}, v{vm}")
            a(f"  s_cbranch_vccnz L_rare_{tag}")
            a(f"L_back_{tag}:")
            rare.append(tag)
            a(f"  v_fma_f32 v{vp}, v{vs}, s36, v{vmc}")
            a(f"  v_exp_f32 v{vp}, v{vp}")
            a("  s_nop 0")
            a(f"  v_cvt_pk_bf16_f32 v{vt0}, v{vp}, v{vp}")
            a(f"  v_add_f32 v{vl}, v{vl}, v{vp}")
            a(f"  v_and_b32 v{vX}, v{vt0}, v{vM0}")
            a(f"  v_and_b32 v{vX+1}, v{vt0}, v{vM1}")
            a("  s_nop 0")
        else:
            pv(x - 1, 0)
    def dep(n):
        if dpat:
            return depth + int(dpat[n % len(dpat)])
        return depth
    def step(n, tag):
        x = n - dmax
        if n < N:
            if n - dep(n) >= 0:
                a(f"  s_waitcnt vmcnt({dep(n) - 1})")
            issue(n)
        elif x < N:
            a(f"  s_waitcnt vmcnt({N - 1 - x})")
        compute(x, tag)

    first = True
    for n in range(4 * U):
        if n == min(dmax, 4 * U - 1) and first:
            first = False
            a(f"  s_mov_b32 s36, {C_SCALE:#x}")
            a("  v_and_b32 v5, 1, v0")
            a("  v_lshlrev_b32 v5, 4, v5")
            a("  v_mov_b32 v6, 0xffff")
            a("  v_lshlrev_b32 v5, v5, v6")
            a("  v_and_b32 v6, 2, v0")
            a("  v_cmp_eq_u32 vcc, 0, v6")
            a("  s_nop 1")
            a(f"  v_cndmask_b32 v{vM0}, 0, v5, vcc")
            a(f"  v_cndmask_b32 v{vM1}, v5, 0, vcc")
            a(f"  v_mov_b32 v{vm}, 0xff800000")
            a(f"  v_mov_b32 v{vmc}, 0")
            a(f"  v_mov_b32 v{vl}, 0")
            for i in range(16):
                a(f"  v_mov_b32 v{vA+i}, 0")
        step(n, f"p{n}")
    a(f"  s_mov_b32 s25, {G // U - 1}")
    a("L_loop:")
    for n in range(4 * U, 8 * U):
        step(n, f"l{n}")
    a("  s_sub_u32 s25, s25, 1")
    a("  s_cmp_lg_u32 s25, 0")
    a("  s_cbranch_scc1 L_loop")
    for n in range(N, N + dmax + 1):
        step(n, f"e{n}")
    if stamps:
        a("  s_memrealtime s[42:43]")
    a(f"  v_mov_b32 v{vt0}, v{vl}")
    a("  v_bfe_u32 v12, v0, 2, 2")
    a("  v_lshrrev_b32 v13, 4, v0")
    a(f"  v_permlane32_swap_b32 v{vt0}, v{vl}")
    a(f"  v_mul_u32_u24 v14, {QSTR}, v12")
    a(f"  v_add_f32 v{vl}, v{vl}, v{vt0}")
    a("  v_lshl_add_u32 v14, v13, 7, v14")
    a(f"  v_mov_b32 v{vt0}, v{vl}")
    a("  v_and_b32 v13, 3, v0")
    a("  v_lshl_add_u32 v14, v13, 2, v14")
    a(f"  v_permlane16_swap_b32 v{vt0}, v{vl}")
    a(f"  s_mul_i32 s26, s3, {WSTR}")
    a(f"  v_add_f32 v{vt1}, v{vl}, v{vt0}")
    a("  v_add_u32 v14, s26, v14")
    a("  s_lshl_b32 s26, s3, 5")
    a(f"  s_add_u32 s26, s26, {ML}")
    a("  v_lshl_add_u32 v15, v12, 3, s26")
    a(f"  v_mov_b32 v8, v{vm}")
    a(f"  v_mov_b32 v9, v{vt1}")
    a("  ds_write_b64 v15, v[8:9]")
    for h in range(2):
        for half in range(2):
            for r in range(4):
                a(f"  ds_write_b32 v14, v{vA + h*8 + half*4 + r} offset:{(128*h + 8*r + 4*half) * 4}")
    a("  s_waitcnt lgkmcnt(0)")
    a("  s_barrier")
    qpw = 4 // nw
    for qi in range(qpw):
        a(f"  ; combine the waves' partials for one query row")
        a(f"  s_mul_i32 s27, s3, {qpw}")
        if qi: a(f"  s_add_u32 s27, s27, {qi}")
        a("  s_lshl_b32 s26, s27, 3")
        a(f"  s_add_u32 s26, s26, {ML}")
        a("  v_mov_b32 v15, s26")
        a(f"  s_mul_i32 s26, s27, {QSTR}")
        a("  v_lshl_add_u32 v14, v0, 4, s26")
        for w in range(nw):
            a(f"  ds_read_b64 v[{16+2*w}:{17+2*w}], v15 offset:{32*w}")
        for w in range(nw):
            a(f"  ds_read_b128 {r4(28+4*w)}, v14 offset:{WSTR*w}")
        a(f"  s_waitcnt lgkmcnt({nw})")
        a("  v_max_f32 v8, v16, v18")
        if nw == 4:
            a("  v_max3_f32 v8, v8, v20, v22")
        for w in range(nw):
            a(f"  v_sub_f32 v{16+2*w}, v{16+2*w}, v8")
        for w in range(nw):
            a(f"  v_mul_f32 v{16+2*w}, s36, v{16+2*w}")
        for w in range(nw):
            a(f"  v_exp_f32 v{16+2*w}, v{16+2*w}")
        a("  s_nop 0")
        a("  v_mul_f32 v9, v16, v17")
        for w in range(1, nw):
            a(f"  v_fmac_f32 v9, v{16+2*w}, v{17+2*w}")
        a("  s_waitcnt lgkmcnt(0)")
        for i in range(4):
            a(f"  v_mul_f32 v{24+i}, v16, v{28+i}")
        for w in range(1, nw):
            for i in range(4):
                a(f"  v_fmac_f32 v{24+i}, v{16+2*w}, v{28+4*w+i}")
        a("  s_lshl_b32 s26, s2, 2")
        a("  s_add_u32 s26, s26, s27")
        a("  s_lshl_b32 s28, s26, 10")
        a("  v_lshl_add_u32 v14, v0, 4, s28")
        a("  s_lshl_b32 s28, s26, 3")
        a("  s_add_u32 s28, s28, 0x100000")
        a("  v_mov_b32 v15, s28")
        a("  global_store_dwordx4 v14, v[24:27], s[14:15]")
        a("  s_mov_b64 exec, 1")
        a("  global_store_dwordx2 v15, v[8:9], s[14:15]")
        a("  s_mov_b64 exec, -1")
        a("  s_nop 1")
    if stamps:
        a(f"  s_mul_i32 s30, s2, {nw}")
        a("  s_add_u32 s30, s30, s3")
        a("  s_lshl_b32 s30, s30, 5")
        a("  s_add_u32 s30, s30, 0x40000000")
        a("  s_add_u32 s14, s14, s30")
        a("  s_addc_u32 s15, s15, 0")
        a("  s_waitcnt lgkmcnt(0)")
        a("  v_mov_b32 v4, s40")
        a("  v_mov_b32 v5, s41")
        a("  v_mov_b32 v6, s42")
        a("  v_mov_b32 v7, s43")
        a("  v_mov_b32 v1, 0")
        a("  s_mov_b64 exec, 1")
        a("  global_store_dwordx4 v1, v[4:7], s[14:15]")
        a("  s_getreg_b32 s44, hwreg(HW_REG_XCC_ID)")
        a("  v_mov_b32 v2, s44")
        a("  global_store_dword v1, v2, s[14:15] offset:16")
    a("L_done:")
    a("  s_endpgm")
    for tag in rare:
        a(f"L_rare_{tag}:")
        a(f"  v_max_f32 v{vt0}, v{vs}, v{vm}")
        a(f"  v_mov_b32 v{vt1}, v{vt0}")
        a("  s_nop 1")
        a(f"  v_permlane32_swap_b32 v{vt0}, v{vt1}")
        a(f"  v_max_f32 v{vt0}, v{vt0}, v{vt1}")
        a(f"  v_mov_b32 v{vt1}, v{vt0}")
        a("  s_nop 1")
        a(f"  v_permlane16_swap_b32 v{vt0}, v{vt1}")
        a(f"  v_max_f32 v{vt0}, v{vt0}, v{vt1}")
        a(f"  v_sub_f32 v{vt1}, v{vm}, v{vt0}")
        a(f"  v_mul_f32 v{vt1}, s36, v{vt1}")
        a(f"  v_exp_f32 v{vt1}, v{vt1}")
        a(f"  v_mov_b32 v{vm}, v{vt0}")
        a(f"  v_mul_f32 v{vmc}, s36, v{vt0}")
        a(f"  v_sub_f32 v{vmc}, 0, v{vmc}")
        a(f"  v_mul_f32 v{vl}, v{vl}, v{vt1}")
        for i in range(16):
            a(f"  v_mul_f32 v{vA+i}, v{vA+i}, v{vt1}")
        a(f"  s_branch L_back_{tag}")
    if mode == 'two':
        a(".globl combine_kernel")
        a(".p2align 8")
        a(".type combine_kernel,@function")
        a("combine_kernel:")
        a("  s_cmp_ge_u32 s2, 128")
        a("  s_cbranch_scc1 L_cdone")
        a("  s_load_dwordx2 s[4:5], s[0:1], 24")
        a("  s_load_dwordx2 s[6:7], s[0:1], 40")
        a("  s_lshl_b32 s8, s2, 13")
        a("  v_lshl_add_u32 v1, v0, 4, s8")
        a("  v_add_u32 v2, 4096, v1")
        a("  v_lshrrev_b32 v3, 6, v0")
        a("  s_lshl_b32 s8, s2, 6")
        a("  s_add_u32 s8, s8, 0x100000")
        a("  v_lshl_add_u32 v3, v3, 3, s8")
        a("  s_lshl_b32 s8, s2, 11")
        a("  v_lshl_add_u32 v4, v0, 3, s8")
        a(f"  s_mov_b32 s9, {C_SCALE:#x}")
        a("  s_waitcnt lgkmcnt(0)")
        a("  global_load_dwordx2 v[6:7], v3, s[6:7]")
        a("  global_load_dwordx2 v[8:9], v3, s[6:7] offset:32")
        a("  global_load_dwordx4 v[12:15], v1, s[6:7]")
        a("  global_load_dwordx4 v[16:19], v2, s[6:7]")
        a("  s_waitcnt vmcnt(2)")
        a("  v_max_f32 v10, v6, v8")
        a("  v_sub_f32 v6, v6, v10")
        a("  v_sub_f32 v8, v8, v10")
        a("  v_mul_f32 v6, s9, v6")
        a("  v_mul_f32 v8, s9, v8")
        a("  v_exp_f32 v6, v6")
        a("  v_exp_f32 v8, v8")
        a("  s_nop 0")
        a("  v_mul_f32 v7, v6, v7")
        a("  v_fmac_f32 v7, v8, v9")
        a("  v_rcp_f32 v7, v7")
        a("  s_nop 0")
        a("  v_mul_f32 v6, v6, v7")
        a("  v_mul_f32 v8, v8, v7")
        a("  s_waitcnt vmcnt(0)")
        for i in range(4):
            a(f"  v_mul_f32 v{12+i}, v6, v{12+i}")
        for i in range(4):
            a(f"  v_fmac_f32 v{12+i}, v8, v{16+i}")
        a("  v_cvt_pk_bf16_f32 v12, v12, v13")
        a("  v_cvt_pk_bf16_f32 v13, v14, v15")
        a("  global_store_dwordx2 v4, v[12:13], s[4:5]")
        a("L_cdone:")
        a("  s_endpgm")
    s = "\n".join(L) + "\n" + kd(KNAME, nv, 48)
    if mode == 'two':
        s += kd("combine_kernel", 20, 16).replace('.section .rodata,"a"\n', '')
    return HEADER + s

if __name__ == "__main__":
    for spec in sys.argv[1:]:
        kw = {}
        for kv in spec.split(","):
            k_, v_ = kv.split("=")
            if k_ == 'flags':
                v_ = v_.replace("+", " ")
                if v_ == 'none': v_ = ''
            elif k_ != 'dpat' and v_.isdigit(): v_ = int(v_)
            kw[k_] = v_
        name = "k_" + spec.replace(",", "_").replace("=", "").replace("+", "") + ".s"
        open(name, "w").write(gen(**kw)); print(name)
```

```python
import sys, math

KNAME = "standalone__softmax_full_bidir__sampling_kernel"
HEADER = """; Kernarg layout for this problem (48 bytes, ptrs only, base s[0:1]):
;
"""
C_SCALE = 0x3DB8AA3B
DP = "row_mask:0xf bank_mask:0xf"
HF = "sc0 sc1"
W1 = '16.12x16.9x12.9x11x12.9x11x12x13x14x16x18x19x20.12x13.9x11x15.9x11x18x19.18.11x12x13x19x20.9x12x13x14x16x17x20.10x12x13x14x16x18x20'
def r4(b): return f"v[{b}:{b+3}]"
def r2(b): return f"v[{b}:{b+1}]"
def mask_of(t): return sum(1 << int(b) for b in t.split("x") if b != "0")

def gen(depth=9, lev=3, deep=14, d0=14, u0=220, ue=60, uq=20, order=W1, cm='7x8', hm='8', p=3,
        ck='30.55.80.100.114', gp='80.80.80.80', gi=0, lo=1, fm=6, fk=4, ref=5, nrep=128, pw=3,
        be=8, bc=100, nt=2, tie=2, spoll=0, noecho=0, notag=0, nohand=0, stamps=0, flags='nt'):
    L = []; a = L.append
    NWG, nw = 256, 2
    km = [mask_of(t) for t in str(order).split(".")]
    assert len(km) == 12
    basis = []
    for m_ in km:
        assert m_ & 0x1ff == 0 and m_ < (1 << 21)
        for b in basis: m_ = min(m_, m_ ^ b)
        assert m_, "key masks must be independent"
        basis.append(m_); basis.sort(reverse=True)
    CM, HM = mask_of(str(cm)), mask_of(str(hm))
    assert {CM, HM} < {128, 256, 384} and CM != HM and p == 3
    LM, TM = km[:2], km[2:]
    KT = TM[:4]; KT[p] = HM
    HI = TM[4:]
    UNIT = 512
    NK = 1024; N = 2048; RU = 16
    dmax = max(deep, d0, depth + lev - 1)
    assert dmax == 14
    T0 = 64 - 2 * nt
    PAD = 2048
    MX = PAD + 65536 + 1536
    CW = MX + 512
    lds = CW + 16
    DX, DL, EX, ZA, FA = PAD, PAD + 4096, PAD + 6144, PAD + 10240, PAD + 12288
    vK, vV, vM0, vM1 = 1, 2, 3, 4
    vm, vmc, vl, vs, vt0, vt1, vp = 5, 6, 7, 8, 9, 10, 11
    vX = 12
    vCur, vAd, vRd2, vRdP = 16, 17, 19, 20
    vCWa, vCWv = 22, 23
    vQ = 24
    vA = 32
    vW, vRd, vsr, vpp = 40, 41, 42, 43
    vD, vO, vF = 45, 46, 47
    vML = 48
    vTr = 50
    vS = 52
    vB = vS
    vR = 84
    nv = vR + RU * 4
    cur = [depth]
    uid = [0]
    def slot(n): return vR + (n % RU) * 4
    def mark(i):
        if stamps == 3: a(f"  s_memrealtime s[{50+2*i}:{51+2*i}]")
    def comb(j, ms):
        c = 0
        for i, m_ in enumerate(ms):
            if j >> i & 1: c ^= m_
        return c
    def xor_bit(dst, src, bit, m_):
        a(f"  v_bfe_i32 v6, v{src}, {bit}, 1")
        a(f"  v_and_b32 v6, {m_:#x}, v6")
        a(f"  v_xor_b32 v{dst}, v{dst}, v6")
    def duty():
        a("  ; loads in flight above the minimum, in 1/256: the dies differ slightly in latency")
        a("  s_getreg_b32 s26, hwreg(HW_REG_XCC_ID)")
        a("  s_bitcmp0_b32 s26, 0")
        a(f"  s_cselect_b32 s38, {ue}, 0")
        a(f"  s_add_u32 s38, s38, {u0}")
        if uq:
            a("  s_bitcmp1_b32 s26, 2")
            a(f"  s_cselect_b32 s26, {uq}, 0")
            a("  s_add_u32 s38, s38, s26")

    a(f"; @launch grid=({NWG},1,1) block=(192,1,1) lds={lds}")
    a('.amdgcn_target "amdgcn-amd-amdhsa--gfx950"')
    a(".text")
    a(f".globl {KNAME}")
    a(".p2align 8")
    a(f".type {KNAME},@function")
    a(f"{KNAME}:")
    a(f"  s_cmp_ge_u32 s2, {NWG}")
    a("  s_cbranch_scc1 L_done")
    a("  s_load_dwordx4 s[4:7], s[0:1], 0       ; q, k")
    a("  s_load_dwordx4 s[8:11], s[0:1], 16     ; v, out")
    a("  s_load_dwordx4 s[12:15], s[0:1], 32")
    if stamps: a("  s_memrealtime s[40:41]")
    a("  v_lshrrev_b32 v7, 6, v0")
    a("  v_and_b32 v0, 63, v0                   ; lane")
    a("  v_readfirstlane_b32 s3, v7             ; wave")
    a("  s_cmp_eq_u32 s3, 2")
    a("  s_cbranch_scc1 L_helper")
    a("  v_and_b32 v8, 3, v0")
    a("  v_lshlrev_b32 v8, 4, v8")
    xor_bit(8, 0, 4, 64)
    xor_bit(8, 0, 5, CM)
    xor_bit(8, 7, 0, HM)
    a("  v_bfe_u32 v6, v0, 2, 2")
    a("  v_lshl_or_b32 v9, v6, 9, v8")
    a(f"  v_xor_b32 v10, {HM:#x}, v9")
    a(f"  v_mov_b32 v{vK}, v8")
    xor_bit(vK, 0, 2, LM[0])
    xor_bit(vK, 0, 3, LM[1])
    xor_bit(vK, 7, 0, TM[p])
    a(f"  v_mov_b32 v{vCur}, v{vK}")
    a("  s_lshl_b32 s28, s2, 21")
    a("  s_lshr_b32 s30, s2, 1")
    a("  s_lshl_b32 s30, s30, 11")
    a("  s_mov_b32 s25, 0")
    a("  s_mov_b32 s24, 1")
    a("  s_mov_b32 s18, 0x200000")
    a("  s_mov_b32 s19, 0x20000")
    a("  s_mov_b32 s34, 2048")
    a("  s_mov_b32 s35, 0x20000")
    a("  s_waitcnt lgkmcnt(0)")
    mark(0)
    a("  s_add_u32 s16, s6, s28")
    a("  s_addc_u32 s17, s7, 0")
    a("  s_and_b32 s17, s17, 0xffff")
    a("  s_add_u32 s32, s4, s30")
    a("  s_addc_u32 s33, s5, 0")
    a("  s_and_b32 s33, s33, 0xffff")
    a(f"  buffer_load_dwordx4 {r4(vQ)}, v9, s[32:35], 0 offen")
    a(f"  buffer_load_dwordx4 {r4(vQ+4)}, v10, s[32:35], 0 offen")

    def addr(n):
        j = n % RU
        c = comb(j, KT if n < NK else TM[:4])
        r = vCur
        if j:
            r = vAd + (j & 1)
            a(f"  v_xor_b32 v{r}, {c:#x}, v{vCur}")
        return r
    def after_issue(n):
        j = n % RU
        if j == 1: a("  s_add_u32 s25, s25, s24")
        if 2 <= j < 8:
            a(f"  s_bitcmp1_b32 s25, {j-2}")
            if j == 2:
                a(f"  s_cselect_b32 s31, {HI[0]:#x}, 0")
            else:
                a(f"  s_cselect_b32 s26, {HI[j-2]:#x}, 0")
                a("  s_xor_b32 s31, s31, s26")
        if j == 9 and n >= RU: a(f"  ds_read_b32 v{vCWv}, v{vCWa}")
        if j == 12 and n >= RU:
            a("  s_waitcnt lgkmcnt(0)")
            a(f"  v_readfirstlane_b32 s38, v{vCWv}")
            if stamps == 4:
                a("  s_add_u32 s52, s52, 1")
                a("  s_mov_b32 m0, s52")
                a(f"  v_writelane_b32 v{vTr if n < NK else vTr + 1}, s50, m0")
    def kinfo(x):
        j = x % RU
        return j >> 3, j & 7
    def reduce_k(x, n0, nops):
        _, gi_ = kinfo(x)
        S = vS + gi_ * 4
        if nops: a(f"  s_nop {nops - 1}")
        a(f"  v_mov_b32_dpp v{vt0}, v{S} quad_perm:[0,0,0,0] {DP}")
        a(f"  v_mov_b32_dpp v{vt1}, v{S+2} quad_perm:[2,2,2,2] {DP}")
        a("  s_nop 0")
        a(f"  v_add_f32_dpp v{vt0}, v{S+1}, v{vt0} quad_perm:[1,1,1,1] {DP}")
        a(f"  v_add_f32_dpp v{vt1}, v{S+3}, v{vt1} quad_perm:[3,3,3,3] {DP}")
        a(f"  v_add_f32 v{vs}, v{vt0}, v{vt1}")
        a(f"  v_max_f32 v{vm}, v{vm}, v{vs}")
        off = (x // RU - n0 // RU) * 1024 + (gi_ >> 2) * 256 + (gi_ & 3) * 4 + PAD
        a(f"  ds_write_b32 v{vW}, v{vs} offset:{off}")
    def lds_read(b, n0):
        rel = b - (n0 - NK) // 4
        assert -1 <= rel < 4
        r = vRdP if rel < 0 else (vRd2 if rel & 2 else vRd)
        a(f"  ds_read_b32 v{vsr}, v{r} offset:{(rel & 3) * 256 + PAD - 512}")
    def prep(b):
        a(f"  v_add_f32 v{vl}, v{vl}, v{vp}")
        a("  s_waitcnt lgkmcnt(0)")
        a(f"  v_fma_f32 v{vp}, v{vsr}, s36, v{vmc}")
        a(f"  v_exp_f32 v{vp}, v{vp}")
        a("  s_nop 0")
        a(f"  v_cvt_pk_bf16_f32 v{vpp + (b & 1)}, v{vp}, v{vp}")
    def mk_x(y):
        X = vX + (y & 1) * 2; i = y & 3; pp = vpp + ((y >> 2) & 1)
        a(f"  v_and_b32_dpp v{X}, v{pp}, v{vM0} quad_perm:[{i},{i},{i},{i}] {DP}")
        a(f"  v_and_b32_dpp v{X+1}, v{pp}, v{vM1} quad_perm:[{i},{i},{i},{i}] {DP}")
    def transition(n0):
        a("  ; scores done: row maximum over the workgroup's keys")
        a(f"  v_mov_b32 v{vt0}, v{vm}")
        a(f"  s_lshl_b32 s26, s3, 8")
        a(f"  s_add_u32 s26, s26, {MX}")
        a(f"  v_permlane32_swap_b32 v{vt0}, v{vm}")
        a(f"  v_max_f32 v{vm}, v{vm}, v{vt0}")
        a(f"  v_mov_b32 v{vt0}, v{vm}")
        a(f"  v_lshl_add_u32 v{vt1}, v0, 2, s26")
        a(f"  v_xor_b32 v{vs}, 0x100, v{vt1}")
        a(f"  v_permlane16_swap_b32 v{vt0}, v{vm}")
        a(f"  v_max_f32 v{vm}, v{vm}, v{vt0}")
        a(f"  ds_write_b32 v{vt1}, v{vm}")
        a("  s_waitcnt lgkmcnt(0)")
        a("  s_barrier")
        a(f"  ds_read_b32 v{vt0}, v{vs}")
        lds_read(0, n0)
        a("  s_waitcnt lgkmcnt(1)")
        a(f"  v_max_f32 v{vm}, v{vm}, v{vt0}")
        a(f"  v_mul_f32 v{vmc}, s36, v{vm}")
        a(f"  v_sub_f32 v{vmc}, 0, v{vmc}")
        prep(0)
        lds_read(1, n0)
        a("  s_nop 0")
        mk_x(0)
    outl = []
    def glue():
        uid[0] += 1; u = uid[0]
        a("  s_cmp_lg_u32 s39, 0")
        a(f"  s_cbranch_scc1 L_glue{u}")
        a(f"L_back{u}:")
        o = outl.append
        o(f"L_glue{u}:")
        o("  s_cmp_eq_u32 s39, 2")
        o("  s_mov_b32 s39, 0")
        o(f"  s_cbranch_scc1 L_dump{u}")
        o(f"  v_cndmask_b32 v{vl}, v{vl}, 0, s[44:45]")
        o("  s_nop 3")
        for i in range(8): o(f"  v_cndmask_b32 v{vB+i}, 0, v{vA+i}, s[44:45]")
        for i in range(8): o(f"  v_cndmask_b32 v{vA+i}, v{vA+i}, 0, s[44:45]")
        o("  s_nop 0")
        o(f"  s_branch L_back{u}")
        o(f"L_dump{u}:")
        o(f"  v_add_f32_dpp v{vt0}, v{vl}, v{vl} quad_perm:[1,0,3,2] {DP}")
        o("  s_nop 1")
        o(f"  v_add_f32_dpp v{vt0}, v{vt0}, v{vt0} quad_perm:[2,3,0,1] {DP}")
        o(f"  v_mov_b32 v{vt1}, v{vt0}")
        o(f"  ds_write_b128 v{vD}, {r4(vA)} offset:{DX}")
        o(f"  ds_write_b128 v{vD}, {r4(vA+4)} offset:{DX + 16}")
        o(f"  v_permlane32_swap_b32 v{vt0}, v{vt1}")
        o(f"  v_add_f32 v{vt0}, v{vt0}, v{vt1}")
        o(f"  v_mov_b32 v{vt1}, v{vt0}")
        o("  s_nop 1")
        o(f"  v_permlane16_swap_b32 v{vt0}, v{vt1}")
        o(f"  v_add_f32 v{vML+1}, v{vt0}, v{vt1}")
        o(f"  v_mov_b32 v{vML}, v{vm}")
        o(f"  v_lshrrev_b32 v{vt0}, 2, v{vD}")
        o(f"  ds_write_b64 v{vt0}, {r2(vML)} offset:{DL}")
        o("  s_waitcnt lgkmcnt(0)")
        for i in range(8): o(f"  v_mov_b32 v{vA+i}, v{vB+i}")
        o("  s_nop 0")
        o(f"  s_branch L_back{u}")
    def compute(x, n0, issued, inloop):
        if x < 0 or x >= N: return
        if x < NK:
            half, gi_ = kinfo(x)
            S = vS + gi_ * 4
            if half == 0:
                a(f"  v_mfma_f32_16x16x32_bf16 {r4(S)}, {r4(slot(x))}, {r4(vQ)}, 0")
            else:
                a(f"  v_mfma_f32_16x16x32_bf16 {r4(S)}, {r4(slot(x))}, {r4(vQ+4)}, {r4(S)}")
            done = lambda z: z >= 0 and kinfo(z)[0] == 1
            if done(x - 1): reduce_k(x - 1, n0, 0 if done(x - 2) else 5)
            if x == NK - 1:
                reduce_k(x, n0, 1)
                transition(n0)
        else:
            y = x - NK
            X = vX + (y & 1) * 2
            if inloop and y % RU == 0: glue()
            if not issued: a("  s_nop 0")
            for half in range(2):
                acc = vA + half * 4
                a(f"  v_mfma_f32_16x16x16_bf16 {r4(acc)}, {r2(X)}, {r2(slot(x) + 2*half)}, {r4(acc)}")
            b = y >> 2
            if y + 1 < NK: mk_x(y + 1)
            if (y & 3) == 1 and b + 1 < 256:
                prep(b + 1)
                if b + 2 < 256: lds_read(b + 2, n0)
    def step(n, n0, inloop=False):
        x = n - dmax
        if n < N:
            r = addr(n)
            if n - cur[0] >= 0:
                a(f"  s_waitcnt vmcnt({cur[0] - 1})")
            srd = "s[16:19]" if n < NK else "s[20:23]"
            a(f"  buffer_load_dwordx4 {r4(slot(n))}, v{r}, {srd}, 0 offen {flags}")
            after_issue(n)
        elif x < N:
            a(f"  s_waitcnt vmcnt({N - 1 - x})")
        if x == 0: mark(1)
        if x == NK: mark(2)
        if n == RU - 1 and stamps == 3: a("  s_waitcnt lgkmcnt(0)")
        compute(x, n0, n < N, inloop)

    cur[0] = d0
    for n in range(RU):
        if n == d0:
            a("  ; V descriptor and lane offsets, constants, accumulators, LDS addresses")
            a("  s_add_u32 s20, s8, s28")
            a("  s_addc_u32 s21, s9, 0")
            a("  s_and_b32 s21, s21, 0xffff")
            a("  s_mov_b32 s22, 0x200000")
            a("  s_mov_b32 s23, 0x20000")
            a(f"  v_and_b32 v{vV}, 7, v0")
            a(f"  v_lshlrev_b32 v{vV}, 4, v{vV}")
            xor_bit(vV, 0, 3, CM)
            xor_bit(vV, 0, 4, LM[0])
            xor_bit(vV, 0, 5, LM[1])
            xor_bit(vV, 7, 0, HM ^ TM[p])
            a(f"  v_and_b32 v{vO}, 15, v0")
            a(f"  v_lshlrev_b32 v{vO}, 3, v{vO}")
            xor_bit(vO, 0, 4, CM)
            xor_bit(vO, 0, 5, 512)
            a("  s_and_b32 s27, s2, 1")
            a(f"  s_mul_i32 s26, s27, {HM}")
            a(f"  v_xor_b32 v{vO}, s26, v{vO}")
            a("  s_lshl_b32 s26, s3, 10")
            a(f"  v_lshl_add_u32 v{vF}, v0, 4, s26")
            a("  s_add_u32 s26, s26, s30")
            a(f"  v_add_u32 v{vO}, s26, v{vO}")
            a("  s_lshl_b32 s26, s3, 11")
            a(f"  v_lshl_add_u32 v{vD}, v0, 5, s26")
            a("  s_cmp_eq_u32 s27, s3")
            a("  s_cselect_b64 s[44:45], -1, 0")
            a(f"  s_mul_i32 s46, s3, {HI[0]:#x}")
            a(f"  s_xor_b32 s46, s46, {comb(T0, HI):#x}")
            a("  s_mov_b32 s39, 0")
            a("  s_mov_b32 s47, 1024")
            a(f"  s_mov_b32 s36, {C_SCALE:#x}")
            a("  v_and_b32 v5, 1, v0")
            a("  v_lshlrev_b32 v5, 4, v5")
            a("  v_mov_b32 v6, 0xffff")
            a("  v_lshlrev_b32 v5, v5, v6")
            a("  v_and_b32 v6, 2, v0")
            a("  v_cmp_eq_u32 vcc, 0, v6")
            a(f"  v_lshlrev_b32 v{vRd}, 2, v0")
            a(f"  v_and_b32 v{vW}, -16, v{vRd}")
            a(f"  v_cndmask_b32 v{vM0}, 0, v5, vcc")
            a(f"  v_cndmask_b32 v{vM1}, v5, 0, vcc")
            a("  v_lshlrev_b32 v6, 9, v7")
            a(f"  v_add_u32 v{vW}, v6, v{vW}")
            a(f"  v_add_u32 v{vRd}, 512, v{vRd}")
            a(f"  v_sub_u32 v{vRd2}, v{vRd}, v6")
            a(f"  v_add_u32 v{vRd}, v6, v{vRd}")
            a(f"  v_mov_b32 v{vm}, 0xff800000")
            a(f"  v_mov_b32 v{vl}, 0")
            a(f"  v_mov_b32 v{vp}, 0")
            for i in range(8):
                a(f"  v_mov_b32 v{vA+i}, 0")
            duty()
            a("  s_lshl_b32 s38, s38, 16")
            a("  s_lshl_b32 s37, s2, 16")
            a(f"  v_mov_b32 v{vCWa}, {CW}")
            if stamps == 4: a("  s_mov_b32 s52, 0")
        step(n, 0)
    def body(n0, d):
        cur[0] = d
        for n in range(n0, n0 + RU): step(n, n0, True)
        a("  s_sub_u32 s29, s29, 1")
        a("  s_cmp_lg_u32 s29, 0")
    def sync(base):
        a(f"  v_xor_b32 v{vCur}, s31, v{base}")
        a("  s_barrier")
        if stamps == 4: a("  s_memrealtime s[50:51]")
    def bodies(name, n0):
        if name == "v":
            a("  s_bitcmp1_b32 s38, 0")
            a(f"  s_cbranch_scc1 L_{name}_c")
        a("  s_and_b32 s37, s37, 0xffffff")
        a("  s_add_u32 s37, s37, s38")
        a("  s_lshr_b32 s26, s37, 24")
        order_ = sorted(range(lev), key=lambda x: abs(x - (u0 + ue / 2) / 256))
        for x in order_[1:]:
            a(f"  s_cmp_eq_u32 s26, {x}")
            a(f"  s_cbranch_scc1 L_{name}_{x}")
        tails = [(f"{x}", depth + x) for x in order_]
        if name == "v": tails.append(("c", deep))
        for i, (tag, d) in enumerate(tails):
            a(f"L_{name}_{tag}:")
            body(n0, d)
            a(f"  s_cbranch_scc1 L_{name}")
            if i < len(tails) - 1: a(f"  s_branch L_{name}_e")
        a(f"L_{name}_e:")
    a("; ---- K phase")
    a(f"  s_mov_b32 s29, {NK // RU - 1}")
    a("L_k:")
    a(f"  v_add_u32 v{vW}, 1024, v{vW}")
    sync(vK)
    bodies("k", RU)
    a(f"  v_add_u32 v{vW}, 1024, v{vW}")
    sync(vV)
    cur[0] = depth + round((u0 + ue / 2) / 256 + 0.25)
    for n in range(NK, NK + RU): step(n, NK)
    a("; ---- V phase")
    a(f"  s_mov_b32 s29, {T0 - 1}")
    a("  s_mov_b32 s33, 0")
    a("L_v:")
    a(f"  v_mov_b32 v{vRdP}, v{vRd2}")
    a(f"  v_add_u32 v{vRd}, s47, v{vRd}")
    a(f"  v_add_u32 v{vRd2}, s47, v{vRd2}")
    a("L_v_go:")
    sync(vV)
    bodies("v", NK + RU)
    a(f"  v_mov_b32 v{vRdP}, v{vRd2}")
    a("  s_add_u32 s33, s33, 1")
    a("  s_cmp_eq_u32 s33, 3")
    a("  s_cbranch_scc1 L_drain")
    a("  s_mov_b32 s39, s33")
    a(f"  s_mov_b32 s29, {nt}")
    a("  s_mov_b32 s24, 2")
    a("  s_mov_b32 s47, 2048")
    a(f"  s_add_u32 s25, s3, {T0}")
    a("  s_mov_b32 s31, s46")
    a("  s_cmp_eq_u32 s33, 2")
    a("  s_cselect_b32 s26, -1, s44")
    a(f"  s_and_b32 s26, s26, {HM ^ (TM[p] if tie == 1 else 0):#x}")
    a(f"  v_xor_b32 v{vV}, s26, v{vV}")
    if tie == 1:
        a("  s_xor_b32 s26, s27, s33")
        a("  s_and_b32 s26, s26, 1")
        a("  s_lshl_b32 s26, s26, 9")
    else:
        a("  s_lshl_b32 s26, s3, 9")
    a("  s_lshl_b32 s32, s25, 10")
    a("  s_add_u32 s32, s32, 512")
    a(f"  v_lshl_add_u32 v{vRd}, v0, 2, s32")
    a(f"  v_subrev_u32 v{vRd2}, s26, v{vRd}")
    a(f"  v_add_u32 v{vRd}, s26, v{vRd}")
    a("  s_branch L_v_go")
    a("L_drain:")
    for n in range(N, N + dmax): step(n, N)
    if stamps: a("  s_memrealtime s[42:43]")
    for i in (3, 6): mark(i)
    a(f"  v_lshrrev_b32 v{vt0}, 5, v{vF}")
    a(f"  v_lshlrev_b32 v{vt0}, 2, v{vt0}")
    a("  s_nop 5")
    a(f"  ds_write_b128 v{vD}, {r4(vA)} offset:{EX}")
    a(f"  ds_write_b128 v{vD}, {r4(vA+4)} offset:{EX + 16}")
    a("  s_waitcnt lgkmcnt(0)")
    a("  s_barrier")
    mark(4)
    if stamps == 3: a("  s_waitcnt lgkmcnt(0)")
    a(f"  ds_read_b128 {r4(vB)}, v{vF} offset:{EX}")
    a(f"  ds_read_b128 {r4(vB+4)}, v{vF} offset:{EX + 2048}")
    a(f"  ds_read_b32 v{vt1}, v{vt0} offset:{FA}")
    a(f"  ds_read_b128 {r4(vB+8)}, v{vF} offset:{ZA}")
    a("  s_waitcnt lgkmcnt(2)")
    for i in range(4): a(f"  v_add_f32 v{vB+i}, v{vB+i}, v{vB+4+i}")
    a("  s_waitcnt lgkmcnt(0)")
    for i in range(4): a(f"  v_fma_f32 v{vB+i}, v{vB+i}, v{vt1}, v{vB+8+i}")
    a(f"  v_cvt_pk_bf16_f32 v{vB}, v{vB}, v{vB+1}")
    a(f"  v_cvt_pk_bf16_f32 v{vB+1}, v{vB+2}, v{vB+3}")
    a(f"  global_store_dwordx2 v{vO}, {r2(vB)}, s[10:11]")
    mark(5)
    if stamps == 2:
        a("  s_waitcnt vmcnt(0)")
        a("  s_memrealtime s[42:43]")
    if stamps == 3:
        a("  s_waitcnt vmcnt(0)")
        mark(7)
    if stamps:
        a(f"  s_mul_i32 s30, s2, {nw}")
        a("  s_add_u32 s30, s30, s3")
        a("  s_lshl_b32 s26, s30, 5")
        a("  s_add_u32 s26, s26, 0x40000000")
        a("  s_add_u32 s14, s14, s26")
        a("  s_addc_u32 s15, s15, 0")
        a("  s_waitcnt lgkmcnt(0)")
        for i in range(4): a(f"  v_mov_b32 v{4+i}, s{40+i}")
        a("  v_mov_b32 v1, 0")
        a("  s_mov_b64 exec, 1")
        a("  global_store_dwordx4 v1, v[4:7], s[14:15]")
        a("  s_getreg_b32 s44, hwreg(HW_REG_XCC_ID)")
        a("  s_getreg_b32 s45, hwreg(HW_REG_HW_ID)")
        a("  v_mov_b32 v2, s44")
        a("  v_mov_b32 v3, s45")
        a("  global_store_dwordx2 v1, v[2:3], s[14:15] offset:16")
        if stamps == 4:
            a("  s_mov_b64 exec, -1")
            a("  s_mul_i32 s30, s30, 480")
            a("  s_add_u32 s30, s30, 0x100000")
            a("  s_add_u32 s14, s14, s30")
            a("  s_addc_u32 s15, s15, 0")
            a("  v_lshlrev_b32 v1, 2, v0")
            a(f"  global_store_dword v1, v{vTr}, s[14:15]")
            a(f"  global_store_dword v1, v{vTr+1}, s[14:15] offset:256")
        if stamps == 3:
            a("  s_add_u32 s14, s14, 0x100000")
            a("  s_addc_u32 s15, s15, 0")
            for i in range(8): a(f"  v_mov_b32 v{12+i}, s{50+2*i}")
            a("  global_store_dwordx4 v1, v[12:15], s[14:15]")
            a("  global_store_dwordx4 v1, v[16:19], s[14:15] offset:16")
    a("L_done:")
    a("  s_endpgm")
    L.extend(outl)

    cks = [int(x) for x in str(ck).split(".")]
    gps = [int(x) for x in str(gp).split(".")] if str(gp) else []
    assert len(gps) == len(cks) - 1 and len(cks) <= 7 and nrep in (64, 128)
    pack = lambda v: sum(x << (8 * i) for i, x in enumerate(v))
    ct = pack(cks + [0]); gt = pack(gps)
    TA = 64 + T0 + nt + 1
    assert bc + 1 < TA <= 127
    hG, hG2, hH, hH2 = 12, 13, 14, 15
    hU, hS, hR, hA, hT = 16, 28, 40, 52, 76
    def slot_loads(d, h, h2):
        a(f"  global_load_dwordx4 {r4(d)}, v{h}, s[14:15] {HF}")
        a(f"  global_load_dwordx4 {r4(d+4)}, v{h}, s[14:15] offset:1024 {HF}")
        a(f"  global_load_dwordx2 {r2(d+8)}, v{h2}, s[14:15] {HF}")
    def put_cw():
        a("  s_or_b32 s30, s29, s28")
        a("  v_mov_b32 v2, s30")
        a("  ds_write_b32 v1, v2")
    a("L_helper:")
    duty()
    a(f"  v_mov_b32 v1, {CW}")
    a("  s_lshl_b32 s29, s38, 16")
    a("  s_mov_b32 s28, 0")
    put_cw()
    a("  s_lshl_b32 s26, s2, 11")
    a(f"  v_lshl_add_u32 v{hG}, v0, 4, s26")
    a(f"  v_xor_b32 v{hH}, 0x800, v{hG}")
    a("  s_lshl_b32 s27, s2, 7")
    a("  s_add_u32 s26, s27, 0x80000")
    a(f"  v_lshrrev_b32 v{hG2}, 4, v0")
    a(f"  v_lshl_add_u32 v{hG2}, v{hG2}, 3, s26")
    a(f"  v_xor_b32 v{hH2}, 0x80, v{hG2}")
    a("  s_xor_b32 s34, s26, 0x80")
    a("  s_add_u32 s26, s27, 0x90000")
    a("  v_mov_b32 v6, s26")
    a("  v_xor_b32 v7, 0x80, v6")
    a("  s_mov_b32 s26, 0xa0000")
    a("  v_lshl_add_u32 v3, v0, 7, s26")
    a("  v_add_u32 v4, 0x2000, v3")
    a(f"  s_and_b32 s20, s27, {(nrep - 1) * 128:#x}")
    a("  s_add_u32 s20, s20, s26")
    a(f"  s_mov_b32 s16, {ct & 0xffffffff:#x}")
    a(f"  s_mov_b32 s17, {ct >> 32:#x}")
    a(f"  s_mov_b32 s18, {gt & 0xffffffff:#x}            ; gains")
    a(f"  s_mov_b32 s19, {gt >> 32:#x}")
    a("  s_mov_b32 s24, 0")
    a("  s_mov_b32 s25, 0")
    a("  s_mov_b32 s32, 0")
    a("  s_mov_b32 s39, 0")
    a("  s_lshr_b32 s31, s2, 2")
    a(f"  s_add_u32 s31, s31, {be}")
    a(f"  s_mov_b32 s36, {C_SCALE:#x}")
    a("  s_waitcnt lgkmcnt(0)")
    a("  s_add_u32 s4, s14, s20")
    a("  s_addc_u32 s5, s15, 0")
    a("  s_add_u32 s6, s14, s34")
    a("  s_addc_u32 s7, s15, 0")
    a("  s_load_dword s21, s[4:5], 0 glc")
    slot_loads(hU, hG, hG2)
    slot_loads(hS, hH, hH2)
    a(f"  s_cmp_eq_u32 s2, {ref}")
    a("  s_cselect_b32 s33, 1, 0")
    a("  s_cbranch_scc0 L_hnot")
    a(f"  s_mov_b32 s32, {cks[-1] + 2 + fm}")
    a(f"  global_load_dword v5, v3, s[14:15] {HF}")
    if nrep > 64: a(f"  global_load_dword v11, v4, s[14:15] {HF}")
    a("L_hnot:")
    a("L_hloop:")
    a("  s_barrier")
    a("  s_add_u32 s24, s24, 1")
    a("  s_waitcnt vmcnt(0) lgkmcnt(0)")
    a("  s_mov_b64 exec, 1")
    a("  s_cmp_eq_u32 s24, 1")
    a("  s_cbranch_scc0 L_he1")
    a("  s_mov_b32 s35, s21")
    a(f"  global_load_dword v8, v6, s[14:15] {HF}")
    a(f"  global_load_dword v9, v7, s[14:15] {HF}")
    a("L_he1:")
    a("  s_cmp_eq_u32 s24, s31")
    a("  s_cbranch_scc0 L_he2")
    if not noecho: a("  v_add_u32 v8, 1, v8")
    a(f"  global_store_dword v6, v8, s[14:15] {HF}")
    a("L_he2:")
    a(f"  s_cmp_eq_u32 s24, {bc}")
    a("  s_cbranch_scc0 L_he3")
    a(f"  global_load_dword v10, v7, s[14:15] {HF}")
    a("L_he3:")
    a(f"  s_cmp_eq_u32 s24, {bc + 1}")
    a("  s_cbranch_scc0 L_he4")
    a("  v_cmp_ne_u32 vcc, v9, v10")
    a("  s_mov_b32 s39, vcc_lo")
    a("L_he4:")
    a("  s_mov_b64 exec, -1")
    a(f"  s_cmp_eq_u32 s24, {TA}")
    a("  s_cbranch_scc1 L_hpub")
    a("L_hpubd:")
    a("  s_cmp_eq_u32 s33, 1")
    a("  s_cbranch_scc1 L_href")
    a("  s_cmp_lg_u32 s32, 0")
    a("  s_cbranch_scc1 L_hwait")
    a("  s_sub_u32 s30, s35, s21")
    a("  s_cmp_eq_u32 s30, s25")
    a("  s_cbranch_scc1 L_hsame")
    a(f"  s_min_u32 s25, s30, {len(cks)}")
    a("  s_lshl_b32 s30, s25, 3")
    a("  s_sub_u32 s30, s30, 8")
    a("  s_lshr_b64 s[22:23], s[16:17], s30")
    a("  s_and_b32 s22, s22, 0xff")
    a("  s_sub_i32 s22, s22, s24")
    a(f"  s_add_i32 s22, s22, {1 + lo}")
    a(f"  s_cmp_eq_u32 s25, {len(cks)}")
    a("  s_cbranch_scc1 L_hfin")
    a("  s_lshr_b64 s[26:27], s[18:19], s30")
    a("  s_and_b32 s26, s26, 0xff")
    a("  s_mul_i32 s26, s26, s22")
    if gi:
        a(f"  s_mul_i32 s22, s22, {gi}")
        a("  s_add_i32 s38, s38, s22")
    a("  s_add_i32 s30, s38, s26")
    a("  s_max_i32 s30, s30, 0")
    a(f"  s_min_i32 s30, s30, {(lev - 1) * 256}")
    a("  s_lshl_b32 s29, s30, 16")
    put_cw()
    a("L_hsame:")
    a("  s_lshl_b32 s30, s25, 3")
    a("  s_lshr_b64 s[22:23], s[16:17], s30")
    a("  s_and_b32 s22, s22, 0xff")
    a(f"  s_add_u32 s23, s24, {pw}")
    a("  s_cmp_lt_u32 s23, s22")
    a("  s_cbranch_scc1 L_hnext")
    a("  s_load_dword s35, s[4:5], 0 glc")
    a("L_hnext:")
    a("  s_cmp_eq_u32 s24, 64")
    a("  s_cbranch_scc0 L_hnb")
    a("  s_barrier")
    a("L_hnb:")
    a("  s_cmp_lt_u32 s24, 127")
    a("  s_cbranch_scc1 L_hloop")
    a("  s_branch L_hget")
    a("L_hfin:")
    a(f"  s_mul_i32 s22, s22, {fk}")
    a("  s_ashr_i32 s22, s22, 1")
    a("  s_sub_i32 s32, s24, s22")
    a(f"  s_add_i32 s32, s32, {fm}")
    a("  s_max_i32 s32, s32, 1")
    a("L_hwait:")
    a("  s_cmp_lt_i32 s24, s32")
    a("  s_cbranch_scc1 L_hnext")
    a("  s_mov_b32 s28, 1")
    put_cw()
    a("  s_branch L_hnext")
    a("L_href:")
    a("  s_and_b32 s30, s16, 0xff")
    a("  s_cmp_eq_u32 s30, s24")
    a("  s_cbranch_scc0 L_hwait")
    a("  v_add_u32 v5, 1, v5")
    a(f"  global_store_dword v3, v5, s[14:15] {HF}")
    if nrep > 64:
        a("  v_add_u32 v11, 1, v11")
        a(f"  global_store_dword v4, v11, s[14:15] {HF}")
    a("  s_lshr_b64 s[16:17], s[16:17], 8")
    a("  s_branch L_hwait")
    a("L_hpub:")
    a("  v_lshlrev_b32 v2, 5, v0")
    a(f"  ds_read_b128 {r4(hA)}, v2 offset:{DX}")
    a(f"  ds_read_b128 {r4(hA+4)}, v2 offset:{DX + 16}")
    a(f"  ds_read_b128 {r4(hA+12)}, v2 offset:{DX + 2048}")
    a(f"  ds_read_b128 {r4(hA+16)}, v2 offset:{DX + 2048 + 16}")
    a("  v_lshrrev_b32 v2, 4, v0")
    a("  v_lshlrev_b32 v2, 5, v2")
    a(f"  ds_read_b64 {r2(hA+8)}, v2 offset:{DL}")
    a(f"  ds_read_b64 {r2(hA+20)}, v2 offset:{DL + 512}")
    if not notag:
        for i in range(10): a(f"  v_not_b32 v{hU+i}, v{hU+i}")
    a("  s_waitcnt lgkmcnt(0)")
    for i in list(range(8)) + [9]: a(f"  v_add_f32 v{hA+i}, v{hA+i}, v{hA+12+i}")
    for i in range(10): a(f"  v_bfi_b32 v{hU+i}, 1, v{hU+i}, v{hA+i}")
    if not nohand:
        a(f"  global_store_dwordx4 v{hG}, {r4(hU)}, s[14:15] {HF}")
        a(f"  global_store_dwordx4 v{hG}, {r4(hU+4)}, s[14:15] offset:1024 {HF}")
        a("  s_mov_b32 exec_lo, 0x00010001")
        a("  s_mov_b32 exec_hi, 0x00010001")
        a(f"  global_store_dwordx2 v{hG2}, {r2(hU+8)}, s[14:15] {HF}")
        a("  s_mov_b64 exec, -1")
    a("  s_branch L_hpubd")
    a("L_hget:")
    a(f"  v_readfirstlane_b32 s21, v{hS+8}")
    a("  s_xor_b32 s26, s2, 1")
    a("  v_mov_b32 v9, s26")
    a("  s_mov_b32 s25, 0")
    if nohand: a("  s_branch L_hhave")
    a("  s_cmp_lg_u32 s39, 0")
    a("  s_cbranch_scc1 L_hpoll")
    a("  v_mov_b32 v8, s2")
    a("  v_mov_b32 v10, 1")
    a("  s_waitcnt vmcnt(0)")
    a("  s_mov_b64 exec, 1")
    a(f"  global_store_byte v8, v10, s[12:13] {HF}")
    a("  s_mov_b64 exec, -1")
    a("L_hpoll:")
    a("  s_add_u32 s25, s25, 1")
    a("  s_bitcmp1_b32 s25, 23")
    a("  s_cbranch_scc1 L_hhave")
    a("  s_cmp_lg_u32 s39, 0")
    a("  s_cbranch_scc1 L_htag")
    a(f"  global_load_ubyte v10, v9, s[12:13] {HF}")
    a("  s_waitcnt vmcnt(0)")
    a("  v_cmp_ne_u32 vcc, 0, v10")
    a("  s_cbranch_vccz L_htag")
    slot_loads(hR, hH, hH2)
    a("  s_waitcnt vmcnt(0)")
    a("  s_branch L_hhave")
    a("L_htag:")
    if spoll:
        a("  s_load_dword s35, s[6:7], 0 glc")
        a("  s_waitcnt lgkmcnt(0)")
        a("  s_xor_b32 s35, s35, s21")
        a("  s_bitcmp1_b32 s35, 0")
        a("  s_cbranch_scc0 L_hpoll")
    slot_loads(hR, hH, hH2)
    a("  s_waitcnt vmcnt(0)")
    for i in range(10): a(f"  v_xor_b32 v{hT+i}, v{hR+i}, v{hS+i}")
    for i in range(5): a(f"  v_and_b32 v{hT+i}, v{hT+i}, v{hT+5+i}")
    a(f"  v_and_b32 v{hT}, v{hT}, v{hT+1}")
    a(f"  v_and_b32 v{hT+2}, v{hT+2}, v{hT+3}")
    a(f"  v_and_b32 v{hT}, v{hT}, v{hT+4}")
    a(f"  v_and_b32 v{hT}, v{hT}, v{hT+2}")
    a(f"  v_and_b32 v{hT}, 1, v{hT}")
    a(f"  v_cmp_eq_u32 vcc, 0, v{hT}")
    a("  s_cbranch_vccnz L_hpoll")
    a("L_hhave:")
    for i in range(10): a(f"  v_and_b32 v{hR+i}, -2, v{hR+i}")
    mo, lo_, mr, lr = hA + 8, hA + 9, hR + 8, hR + 9
    a(f"  v_max_f32 v2, v{mo}, v{mr}")
    a(f"  v_sub_f32 v{mo}, v{mo}, v2")
    a(f"  v_sub_f32 v{mr}, v{mr}, v2")
    a(f"  v_mul_f32 v{mo}, s36, v{mo}")
    a(f"  v_mul_f32 v{mr}, s36, v{mr}")
    a(f"  v_exp_f32 v{mo}, v{mo}")
    a(f"  v_exp_f32 v{mr}, v{mr}")
    a("  v_lshlrev_b32 v3, 5, v0")
    a(f"  v_mul_f32 v2, v{mo}, v{lo_}")
    a(f"  v_fmac_f32 v2, v{mr}, v{lr}")
    a("  v_rcp_f32 v2, v2")
    a("  v_lshlrev_b32 v4, 2, v0")
    a(f"  v_mul_f32 v{mo}, v{mo}, v2")
    a(f"  v_mul_f32 v{mr}, v{mr}, v2")
    for i in range(8): a(f"  v_mul_f32 v{hR+i}, v{mr}, v{hR+i}")
    a(f"  ds_write_b32 v4, v{mo} offset:{FA}")
    a(f"  ds_write_b128 v3, {r4(hR)} offset:{ZA}")
    a(f"  ds_write_b128 v3, {r4(hR+4)} offset:{ZA + 16}")
    a("  s_waitcnt lgkmcnt(0)")
    a("  s_barrier")
    a("  s_endpgm")
    nv4 = (nv + 3) // 4 * 4
    a(f""".section .rodata,"a"
.p2align 6
.amdhsa_kernel {KNAME}
  .amdhsa_next_free_vgpr {nv4}
  .amdhsa_next_free_sgpr {72 if stamps else 48}
  .amdhsa_accum_offset {nv4}
  .amdhsa_group_segment_fixed_size 0
  .amdhsa_kernarg_size 48
  .amdhsa_user_sgpr_count 2
  .amdhsa_user_sgpr_kernarg_segment_ptr 1
  .amdhsa_system_sgpr_workgroup_id_x 1
  .amdhsa_float_denorm_mode_32 3
.end_amdhsa_kernel""")
    return HEADER + "\n".join(L) + "\n"

def parse(spec):
    kw = {}
    for kv in spec.split(","):
        k_, v_ = kv.split("=")
        if k_ == 'flags': v_ = '' if v_ == 'none' else v_.replace("+", " ")
        elif k_ not in ('order', 'cm', 'hm', 'ck', 'gp') and v_.lstrip("-").isdigit(): v_ = int(v_)
        kw[k_] = v_
    return kw
if __name__ == "__main__":
    for spec in sys.argv[1:]:
        name = "k14_" + spec.replace(",", "_").replace("=", "").replace("+", "")[:80] + ".s"
        open(name, "w").write(gen(**parse(spec))); print(name)
```

```python
import sys, math

KNAME = "standalone__softmax_full_bidir__sampling_kernel"
HEADER = """; Kernarg layout for this problem (48 bytes, ptrs only, base s[0:1]):
;
"""
C_SCALE = 0x3DB8AA3B
DP = "row_mask:0xf bank_mask:0xf"
HF = "sc0 sc1"
W1 = '16.12x16.9x12.9x11x12.9x11x12x13x14x16x18x19x20.12x13.9x11x15.9x11x18x19.18.11x12x13x19x20.9x12x13x14x16x17x20.10x12x13x14x16x18x20'
def r4(b): return f"v[{b}:{b+3}]"
def r2(b): return f"v[{b}:{b+1}]"
def mask_of(t): return sum(1 << int(b) for b in t.split("x") if b != "0")

def gen(depth=9, lev=3, deep=14, d0=14, u0=210, ue=35, uq=0, ur=0, umax=9999, order=W1, cm='7x8', hm='8', p=3,
        ck='30.55.80.102.118', gp='80.80.80.80', gi=0, lo=1, fm=4, fk=6, ref=5, nrep=128, pw=3,
        be=8, bc=90, nt=2, tie=2, spoll=0, noecho=0, notag=0, nohand=0, pair=0, nocomp=0, fast=1, jr=12, qk=0, lsnap=0, ref2=-1, roff=0x4000, sub=1, so=0, sl=0, rfm=2, stamps=0, flags='nt'):
    L = []; a = L.append
    NWG, nw = 256, 2
    km = [mask_of(t) for t in str(order).split(".")]
    assert len(km) == 12
    basis = []
    for m_ in km:
        assert m_ & 0x1ff == 0 and m_ < (1 << 21)
        for b in basis: m_ = min(m_, m_ ^ b)
        assert m_, "key masks must be independent"
        basis.append(m_); basis.sort(reverse=True)
    CM, HM = mask_of(str(cm)), mask_of(str(hm))
    assert {CM, HM} < {128, 256, 384} and CM != HM and p == 3
    LM, TM = km[:2], km[2:]
    KT = TM[:4]; KT[p] = HM
    HI = TM[4:]
    UNIT = 512
    NK = 1024; N = 2048; RU = 16
    dmax = max(deep, d0, depth + lev - 1)
    assert dmax == 14
    T0 = 64 - 2 * nt
    PAD = 2048
    MX = PAD + 65536 + 1536
    CW = MX + 512
    lds = CW + 16
    DX, DL, EX, ZA, FA = PAD, PAD + 4096, PAD + 6144, PAD + 10240, PAD + 12288
    vK, vV, vM0, vM1 = 1, 2, 3, 4
    vm, vmc, vl, vs, vt0, vt1, vp = 5, 6, 7, 8, 9, 10, 11
    vX = 12
    vCur, vAd, vRd2, vRdP = 16, 17, 19, 20
    vCWa, vCWv = 22, 23
    vQ = 24
    vA = 32
    vW, vRd, vsr, vpp = 40, 41, 42, 43
    vD, vO, vF = 45, 46, 47
    vML = 48
    vTr = 50
    vS = 52
    vB = vS
    vR = 84
    nv = vR + RU * 4
    cur = [depth]
    uid = [0]
    def slot(n): return vR + (n % RU) * 4
    def mark(i):
        if stamps == 3: a(f"  s_memrealtime s[{50+2*i}:{51+2*i}]")
    def comb(j, ms):
        c = 0
        for i, m_ in enumerate(ms):
            if j >> i & 1: c ^= m_
        return c
    def xor_bit(dst, src, bit, m_):
        a(f"  v_bfe_i32 v6, v{src}, {bit}, 1")
        a(f"  v_and_b32 v6, {m_:#x}, v6")
        a(f"  v_xor_b32 v{dst}, v{dst}, v6")
    def duty():
        a("  ; loads in flight above the minimum, in 1/256: the dies differ slightly in latency")
        a("  s_getreg_b32 s26, hwreg(HW_REG_XCC_ID)")
        a("  s_bitcmp0_b32 s26, 0")
        a(f"  s_cselect_b32 s38, {ue}, 0")
        a(f"  s_add_u32 s38, s38, {u0}")
        if uq:
            a("  s_bitcmp1_b32 s26, 2")
            a(f"  s_cselect_b32 s26, {uq}, 0")
            a("  s_add_u32 s38, s38, s26")
        if ur:
            a(f"  s_cmp_eq_u32 s2, {ref}")
            a(f"  s_cselect_b32 s26, {ur}, 0")
            a("  s_sub_u32 s38, s38, s26")

    a(f"; @launch grid=({NWG},1,1) block=(192,1,1) lds={lds}")
    a('.amdgcn_target "amdgcn-amd-amdhsa--gfx950"')
    a(".text")
    a(f".globl {KNAME}")
    a(".p2align 8")
    a(f".type {KNAME},@function")
    a(f"{KNAME}:")
    a(f"  s_cmp_ge_u32 s2, {NWG}")
    a("  s_cbranch_scc1 L_done")
    a("  s_load_dwordx4 s[4:7], s[0:1], 0       ; q, k")
    a("  s_load_dwordx4 s[8:11], s[0:1], 16     ; v, out")
    a("  s_load_dwordx4 s[12:15], s[0:1], 32")
    if stamps: a("  s_memrealtime s[40:41]")
    a("  v_lshrrev_b32 v7, 6, v0")
    a("  v_and_b32 v0, 63, v0                   ; lane")
    a("  v_readfirstlane_b32 s3, v7             ; wave")
    a("  s_cmp_eq_u32 s3, 2")
    a("  s_cbranch_scc1 L_helper")
    a("  v_and_b32 v8, 3, v0")
    a("  v_lshlrev_b32 v8, 4, v8")
    xor_bit(8, 0, 4, 64)
    xor_bit(8, 0, 5, CM)
    xor_bit(8, 7, 0, HM)
    a("  v_bfe_u32 v6, v0, 2, 2")
    a("  v_lshl_or_b32 v9, v6, 9, v8")
    a(f"  v_xor_b32 v10, {HM:#x}, v9")
    a(f"  v_mov_b32 v{vK}, v8")
    xor_bit(vK, 0, 2, LM[0])
    xor_bit(vK, 0, 3, LM[1])
    xor_bit(vK, 7, 0, TM[p])
    a(f"  v_mov_b32 v{vCur}, v{vK}")
    a("  s_lshl_b32 s28, s2, 21")
    a("  s_lshr_b32 s30, s2, 1")
    a("  s_lshl_b32 s30, s30, 11")
    a("  s_mov_b32 s25, 0")
    a("  s_mov_b32 s24, 1")
    a("  s_mov_b32 s18, 0x200000")
    a("  s_mov_b32 s19, 0x20000")
    a("  s_mov_b32 s34, 2048")
    a("  s_mov_b32 s35, 0x20000")
    a("  s_waitcnt lgkmcnt(0)")
    mark(0)
    a("  s_add_u32 s16, s6, s28")
    a("  s_addc_u32 s17, s7, 0")
    a("  s_and_b32 s17, s17, 0xffff")
    def q_loads():
        a("  s_add_u32 s32, s4, s30")
        a("  s_addc_u32 s33, s5, 0")
        a("  s_and_b32 s33, s33, 0xffff")
        a(f"  buffer_load_dwordx4 {r4(vQ)}, v9, s[32:35], 0 offen")
        a(f"  buffer_load_dwordx4 {r4(vQ+4)}, v10, s[32:35], 0 offen")
    if not qk: q_loads()

    def addr(n):
        j = n % RU
        c = comb(j, KT if n < NK else TM[:4])
        r = vCur
        if j:
            r = vAd + (j & 1)
            a(f"  v_xor_b32 v{r}, {c:#x}, v{vCur}")
        return r
    def after_issue(n):
        j = n % RU
        if j == 1: a("  s_add_u32 s25, s25, s24")
        if 2 <= j < 8:
            a(f"  s_bitcmp1_b32 s25, {j-2}")
            if j == 2:
                a(f"  s_cselect_b32 s31, {HI[0]:#x}, 0")
            else:
                a(f"  s_cselect_b32 s26, {HI[j-2]:#x}, 0")
                a("  s_xor_b32 s31, s31, s26")
        if j == jr and n >= RU: a(f"  ds_read_b32 v{vCWv}, v{vCWa}")
        if j == jr + 3 and n >= RU:
            a("  s_waitcnt lgkmcnt(0)")
            a(f"  v_readfirstlane_b32 s38, v{vCWv}")
            if stamps == 4:
                a("  s_add_u32 s52, s52, 1")
                a("  s_mov_b32 m0, s52")
                a(f"  v_writelane_b32 v{vTr if n < NK else vTr + 1}, s50, m0")
    def kinfo(x):
        j = x % RU
        return j >> 3, j & 7
    def reduce_k(x, n0, nops):
        _, gi_ = kinfo(x)
        S = vS + gi_ * 4
        if nops: a(f"  s_nop {nops - 1}")
        a(f"  v_mov_b32_dpp v{vt0}, v{S} quad_perm:[0,0,0,0] {DP}")
        a(f"  v_mov_b32_dpp v{vt1}, v{S+2} quad_perm:[2,2,2,2] {DP}")
        a("  s_nop 0")
        a(f"  v_add_f32_dpp v{vt0}, v{S+1}, v{vt0} quad_perm:[1,1,1,1] {DP}")
        a(f"  v_add_f32_dpp v{vt1}, v{S+3}, v{vt1} quad_perm:[3,3,3,3] {DP}")
        a(f"  v_add_f32 v{vs}, v{vt0}, v{vt1}")
        a(f"  v_max_f32 v{vm}, v{vm}, v{vs}")
        off = (x // RU - n0 // RU) * 1024 + (gi_ >> 2) * 256 + (gi_ & 3) * 4 + PAD
        a(f"  ds_write_b32 v{vW}, v{vs} offset:{off}")
    def lds_read(b, n0):
        rel = b - (n0 - NK) // 4
        assert -1 <= rel < 4
        r = vRdP if rel < 0 else (vRd2 if rel & 2 else vRd)
        a(f"  ds_read_b32 v{vsr}, v{r} offset:{(rel & 3) * 256 + PAD - 512}")
    def prep(b):
        a(f"  v_add_f32 v{vl}, v{vl}, v{vp}")
        a("  s_waitcnt lgkmcnt(0)")
        a(f"  v_fma_f32 v{vp}, v{vsr}, s36, v{vmc}")
        a(f"  v_exp_f32 v{vp}, v{vp}")
        a("  s_nop 0")
        a(f"  v_cvt_pk_bf16_f32 v{vpp + (b & 1)}, v{vp}, v{vp}")
    def mk_x(y):
        X = vX + (y & 1) * 2; i = y & 3; pp = vpp + ((y >> 2) & 1)
        a(f"  v_and_b32_dpp v{X}, v{pp}, v{vM0} quad_perm:[{i},{i},{i},{i}] {DP}")
        a(f"  v_and_b32_dpp v{X+1}, v{pp}, v{vM1} quad_perm:[{i},{i},{i},{i}] {DP}")
    def transition(n0):
        a("  ; scores done: row maximum over the workgroup's keys")
        a(f"  v_mov_b32 v{vt0}, v{vm}")
        a(f"  s_lshl_b32 s26, s3, 8")
        a(f"  s_add_u32 s26, s26, {MX}")
        a(f"  v_permlane32_swap_b32 v{vt0}, v{vm}")
        a(f"  v_max_f32 v{vm}, v{vm}, v{vt0}")
        a(f"  v_mov_b32 v{vt0}, v{vm}")
        a(f"  v_lshl_add_u32 v{vt1}, v0, 2, s26")
        a(f"  v_xor_b32 v{vs}, 0x100, v{vt1}")
        a(f"  v_permlane16_swap_b32 v{vt0}, v{vm}")
        a(f"  v_max_f32 v{vm}, v{vm}, v{vt0}")
        a(f"  ds_write_b32 v{vt1}, v{vm}")
        a("  s_waitcnt lgkmcnt(0)")
        a("  s_barrier")
        a(f"  ds_read_b32 v{vt0}, v{vs}")
        lds_read(0, n0)
        a("  s_waitcnt lgkmcnt(1)")
        a(f"  v_max_f32 v{vm}, v{vm}, v{vt0}")
        a(f"  v_mul_f32 v{vmc}, s36, v{vm}")
        a(f"  v_sub_f32 v{vmc}, 0, v{vmc}")
        a(f"  v_and_b32 v{vmc}, -2, v{vmc}")
        prep(0)
        lds_read(1, n0)
        a("  s_nop 0")
        mk_x(0)
    outl = []
    def glue():
        uid[0] += 1; u = uid[0]
        a("  s_cmp_lg_u32 s39, 0")
        a(f"  s_cbranch_scc1 L_glue{u}")
        a(f"L_back{u}:")
        o = outl.append
        o(f"L_glue{u}:")
        o("  s_cmp_eq_u32 s39, 2")
        o("  s_mov_b32 s39, 0")
        o(f"  s_cbranch_scc1 L_dump{u}")
        o(f"  v_cndmask_b32 v{vl}, v{vl}, 0, s[44:45]")
        o("  s_nop 3")
        for i in range(8): o(f"  v_cndmask_b32 v{vB+i}, 0, v{vA+i}, s[44:45]")
        for i in range(8): o(f"  v_cndmask_b32 v{vA+i}, v{vA+i}, 0, s[44:45]")
        o("  s_nop 0")
        o(f"  s_branch L_back{u}")
        o(f"L_dump{u}:")
        o(f"  v_add_f32_dpp v{vt0}, v{vl}, v{vl} quad_perm:[1,0,3,2] {DP}")
        o("  s_nop 1")
        o(f"  v_add_f32_dpp v{vt0}, v{vt0}, v{vt0} quad_perm:[2,3,0,1] {DP}")
        o(f"  v_mov_b32 v{vt1}, v{vt0}")
        o(f"  ds_write_b128 v{vD}, {r4(vA)} offset:{DX}")
        o(f"  ds_write_b128 v{vD}, {r4(vA+4)} offset:{DX + 16}")
        o(f"  v_permlane32_swap_b32 v{vt0}, v{vt1}")
        o(f"  v_add_f32 v{vt0}, v{vt0}, v{vt1}")
        o(f"  v_mov_b32 v{vt1}, v{vt0}")
        o("  s_nop 1")
        o(f"  v_permlane16_swap_b32 v{vt0}, v{vt1}")
        o(f"  v_add_f32 v{vML+1}, v{vt0}, v{vt1}")
        o(f"  v_mov_b32 v{vML}, v{vmc}")
        o(f"  v_lshrrev_b32 v{vt0}, 2, v{vD}")
        o(f"  ds_write_b64 v{vt0}, {r2(vML)} offset:{DL}")
        o("  s_waitcnt lgkmcnt(0)")
        for i in range(8): o(f"  v_mov_b32 v{vA+i}, v{vB+i}")
        o("  s_nop 0")
        o(f"  s_branch L_back{u}")
    def compute(x, n0, issued, inloop, tight=0):
        if x < 0 or x >= N: return
        if nocomp and inloop: return
        if x < NK:
            half, gi_ = kinfo(x)
            S = vS + gi_ * 4
            if half == 0:
                a(f"  v_mfma_f32_16x16x32_bf16 {r4(S)}, {r4(slot(x))}, {r4(vQ)}, 0")
            else:
                a(f"  v_mfma_f32_16x16x32_bf16 {r4(S)}, {r4(slot(x))}, {r4(vQ+4)}, {r4(S)}")
            done = lambda z: z >= 0 and kinfo(z)[0] == 1
            if done(x - 1): reduce_k(x - 1, n0, 0 if done(x - 2) else max(5, tight))
            if x == NK - 1:
                reduce_k(x, n0, 1)
                transition(n0)
        else:
            y = x - NK
            X = vX + (y & 1) * 2
            if inloop and y % RU == 0: glue()
            if not issued: a("  s_nop 0")
            for half in range(2):
                acc = vA + half * 4
                a(f"  v_mfma_f32_16x16x16_bf16 {r4(acc)}, {r2(X)}, {r2(slot(x) + 2*half)}, {r4(acc)}")
            b = y >> 2
            if y + 1 < NK: mk_x(y + 1)
            if (y & 3) == 1 and b + 1 < 256:
                prep(b + 1)
                if b + 2 < 256: lds_read(b + 2, n0)
    def step(n, n0, inloop=False):
        x = n - dmax
        if n < N:
            r = addr(n)
            if n - cur[0] >= 0:
                a(f"  s_waitcnt vmcnt({cur[0] - 1})")
            srd = "s[16:19]" if n < NK else "s[20:23]"
            a(f"  buffer_load_dwordx4 {r4(slot(n))}, v{r}, {srd}, 0 offen {flags}")
            after_issue(n)
        elif x < N:
            a(f"  s_waitcnt vmcnt({N - 1 - x})")
        if x == 0: mark(1)
        if x == NK: mark(2)
        if n == RU - 1 and stamps == 3: a("  s_waitcnt lgkmcnt(0)")
        compute(x, n0, n < N, inloop)

    cur[0] = d0
    for n in range(RU):
        if n == d0:
            a("  ; V descriptor and lane offsets, constants, accumulators, LDS addresses")
            a("  s_add_u32 s20, s8, s28")
            a("  s_addc_u32 s21, s9, 0")
            a("  s_and_b32 s21, s21, 0xffff")
            a("  s_mov_b32 s22, 0x200000")
            a("  s_mov_b32 s23, 0x20000")
            a(f"  v_and_b32 v{vV}, 7, v0")
            a(f"  v_lshlrev_b32 v{vV}, 4, v{vV}")
            xor_bit(vV, 0, 3, CM)
            xor_bit(vV, 0, 4, LM[0])
            xor_bit(vV, 0, 5, LM[1])
            xor_bit(vV, 7, 0, HM ^ TM[p])
            a(f"  v_and_b32 v{vO}, 15, v0")
            a(f"  v_lshlrev_b32 v{vO}, 3, v{vO}")
            xor_bit(vO, 0, 4, CM)
            xor_bit(vO, 0, 5, 512)
            a("  s_and_b32 s27, s2, 1")
            a(f"  s_mul_i32 s26, s27, {HM}")
            a(f"  v_xor_b32 v{vO}, s26, v{vO}")
            a("  s_lshl_b32 s26, s3, 10")
            a(f"  v_lshl_add_u32 v{vF}, v0, 4, s26")
            a("  s_add_u32 s26, s26, s30")
            a(f"  v_add_u32 v{vO}, s26, v{vO}")
            a("  s_lshl_b32 s26, s3, 11")
            a(f"  v_lshl_add_u32 v{vD}, v0, 5, s26")
            a("  s_cmp_eq_u32 s27, s3")
            a("  s_cselect_b64 s[44:45], -1, 0")
            a(f"  s_mul_i32 s46, s3, {HI[0]:#x}")
            a(f"  s_xor_b32 s46, s46, {comb(T0, HI):#x}")
            a("  s_mov_b32 s39, 0")
            a("  s_mov_b32 s47, 1024")
            a(f"  s_mov_b32 s36, {C_SCALE:#x}")
            a("  v_and_b32 v5, 1, v0")
            a("  v_lshlrev_b32 v5, 4, v5")
            a("  v_mov_b32 v6, 0xffff")
            a("  v_lshlrev_b32 v5, v5, v6")
            a("  v_and_b32 v6, 2, v0")
            a("  v_cmp_eq_u32 vcc, 0, v6")
            a(f"  v_lshlrev_b32 v{vRd}, 2, v0")
            a(f"  v_and_b32 v{vW}, -16, v{vRd}")
            a(f"  v_cndmask_b32 v{vM0}, 0, v5, vcc")
            a(f"  v_cndmask_b32 v{vM1}, v5, 0, vcc")
            a("  v_lshlrev_b32 v6, 9, v7")
            a(f"  v_add_u32 v{vW}, v6, v{vW}")
            a(f"  v_add_u32 v{vRd}, 512, v{vRd}")
            a(f"  v_sub_u32 v{vRd2}, v{vRd}, v6")
            a(f"  v_add_u32 v{vRd}, v6, v{vRd}")
            a(f"  v_mov_b32 v{vm}, 0xff800000")
            a(f"  v_mov_b32 v{vl}, 0")
            a(f"  v_mov_b32 v{vp}, 0")
            for i in range(8):
                a(f"  v_mov_b32 v{vA+i}, 0")
            duty()
            a("  s_lshl_b32 s38, s38, 16")
            a("  s_lshl_b32 s37, s2, 16")
            a(f"  v_mov_b32 v{vCWa}, {CW}")
            if stamps == 4: a("  s_mov_b32 s52, 0")
        step(n, 0)
        if qk and n == 0: q_loads()
    def step2(n, n0, g):
        rs = []
        for i in range(g):
            j = (n + i) % RU
            c = comb(j, KT if n < NK else TM[:4])
            r = vCur
            if j:
                r = (17, 18, 21, 50)[i]
                a(f"  v_xor_b32 v{r}, {c:#x}, v{vCur}")
            rs.append(r)
        srd = "s[16:19]" if n < NK else "s[20:23]"
        for i in range(g):
            if pair & 1: a(f"  s_waitcnt vmcnt({cur[0] - 1})")
            elif i == 0: a(f"  s_waitcnt vmcnt({cur[0] - g})")
            a(f"  buffer_load_dwordx4 {r4(slot(n + i))}, v{rs[i]}, {srd}, 0 offen {flags}")
        for i in range(g): after_issue(n + i)
        for i in range(g):
            if i and n >= NK: a("  s_nop 0")
            compute(n + i - dmax, n0, i == 0, True, 8 if i else 0)
    def body(n0, d):
        cur[0] = d
        if pair:
            for n in range(n0, n0 + RU, 2): step2(n, n0, 2)
        else:
            for n in range(n0, n0 + RU): step(n, n0, True)
        a("  s_sub_u32 s29, s29, 1")
        a("  s_cmp_lg_u32 s29, 0")
    def sync(base):
        a(f"  v_xor_b32 v{vCur}, s31, v{base}")
        a("  s_barrier")
        if stamps == 4: a("  s_memrealtime s[50:51]")
    def bodies(name, n0):
        if name == "v":
            a("  s_bitcmp1_b32 s38, 0")
            a(f"  s_cbranch_scc1 L_{name}_c")
        a("  s_and_b32 s37, s37, 0xffffff")
        a("  s_add_u32 s37, s37, s38")
        a("  s_lshr_b32 s26, s37, 24")
        order_ = sorted(range(lev), key=lambda x: abs(x - (u0 + ue / 2) / 256))
        for x in order_[1:]:
            a(f"  s_cmp_eq_u32 s26, {x}")
            a(f"  s_cbranch_scc1 L_{name}_{x}")
        tails = [(f"{x}", depth + x) for x in order_]
        if name == "v": tails.append(("c", deep))
        for i, (tag, d) in enumerate(tails):
            a(f"L_{name}_{tag}:")
            body(n0, d)
            a(f"  s_cbranch_scc1 L_{name}")
            if i < len(tails) - 1: a(f"  s_branch L_{name}_e")
        a(f"L_{name}_e:")
    a("; ---- K phase")
    a(f"  s_mov_b32 s29, {NK // RU - 1}")
    a("L_k:")
    a(f"  v_add_u32 v{vW}, 1024, v{vW}")
    sync(vK)
    bodies("k", RU)
    a(f"  v_add_u32 v{vW}, 1024, v{vW}")
    sync(vV)
    cur[0] = depth + round((u0 + ue / 2) / 256 + 0.25)
    for n in range(NK, NK + RU): step(n, NK)
    a("; ---- V phase")
    a(f"  s_mov_b32 s29, {T0 - 1}")
    a("  s_mov_b32 s33, 0")
    a("L_v:")
    a(f"  v_mov_b32 v{vRdP}, v{vRd2}")
    a(f"  v_add_u32 v{vRd}, s47, v{vRd}")
    a(f"  v_add_u32 v{vRd2}, s47, v{vRd2}")
    a("L_v_go:")
    sync(vV)
    bodies("v", NK + RU)
    a(f"  v_mov_b32 v{vRdP}, v{vRd2}")
    a("  s_add_u32 s33, s33, 1")
    a("  s_cmp_eq_u32 s33, 3")
    a("  s_cbranch_scc1 L_drain")
    a("  s_mov_b32 s39, s33")
    a(f"  s_mov_b32 s29, {nt}")
    a("  s_mov_b32 s24, 2")
    a("  s_mov_b32 s47, 2048")
    a(f"  s_add_u32 s25, s3, {T0}")
    a("  s_mov_b32 s31, s46")
    a("  s_cmp_eq_u32 s33, 2")
    a("  s_cselect_b32 s26, -1, s44")
    a(f"  s_and_b32 s26, s26, {HM ^ (TM[p] if tie == 1 else 0):#x}")
    a(f"  v_xor_b32 v{vV}, s26, v{vV}")
    if tie == 1:
        a("  s_xor_b32 s26, s27, s33")
        a("  s_and_b32 s26, s26, 1")
        a("  s_lshl_b32 s26, s26, 9")
    else:
        a("  s_lshl_b32 s26, s3, 9")
    a("  s_lshl_b32 s32, s25, 10")
    a("  s_add_u32 s32, s32, 512")
    a(f"  v_lshl_add_u32 v{vRd}, v0, 2, s32")
    a(f"  v_subrev_u32 v{vRd2}, s26, v{vRd}")
    a(f"  v_add_u32 v{vRd}, s26, v{vRd}")
    a("  s_branch L_v_go")
    a("L_drain:")
    for n in range(N, N + dmax): step(n, N)
    if stamps: a("  s_memrealtime s[42:43]")
    for i in (3, 6): mark(i)
    a(f"  v_lshrrev_b32 v{vt0}, 5, v{vF}")
    a(f"  v_lshlrev_b32 v{vt0}, 2, v{vt0}")
    a("  s_nop 5")
    a(f"  ds_write_b128 v{vD}, {r4(vA)} offset:{EX}")
    a(f"  ds_write_b128 v{vD}, {r4(vA+4)} offset:{EX + 16}")
    a("  s_waitcnt lgkmcnt(0)")
    a("  s_barrier")
    mark(4)
    if stamps == 3: a("  s_waitcnt lgkmcnt(0)")
    a(f"  ds_read_b128 {r4(vB)}, v{vF} offset:{EX}")
    a(f"  ds_read_b128 {r4(vB+4)}, v{vF} offset:{EX + 2048}")
    a(f"  ds_read_b32 v{vt1}, v{vt0} offset:{FA}")
    a(f"  ds_read_b128 {r4(vB+8)}, v{vF} offset:{ZA}")
    a("  s_waitcnt lgkmcnt(2)")
    for i in range(4): a(f"  v_add_f32 v{vB+i}, v{vB+i}, v{vB+4+i}")
    a("  s_waitcnt lgkmcnt(0)")
    for i in range(4): a(f"  v_fma_f32 v{vB+i}, v{vB+i}, v{vt1}, v{vB+8+i}")
    a(f"  v_cvt_pk_bf16_f32 v{vB}, v{vB}, v{vB+1}")
    a(f"  v_cvt_pk_bf16_f32 v{vB+1}, v{vB+2}, v{vB+3}")
    a(f"  global_store_dwordx2 v{vO}, {r2(vB)}, s[10:11]")
    mark(5)
    if stamps == 2:
        a("  s_waitcnt vmcnt(0)")
        a("  s_memrealtime s[42:43]")
    if stamps == 3:
        a("  s_waitcnt vmcnt(0)")
        mark(7)
    if stamps:
        a(f"  s_mul_i32 s30, s2, {nw}")
        a("  s_add_u32 s30, s30, s3")
        a("  s_lshl_b32 s26, s30, 5")
        a("  s_add_u32 s26, s26, 0x40000000")
        a("  s_add_u32 s14, s14, s26")
        a("  s_addc_u32 s15, s15, 0")
        a("  s_waitcnt lgkmcnt(0)")
        for i in range(4): a(f"  v_mov_b32 v{4+i}, s{40+i}")
        a("  v_mov_b32 v1, 0")
        a("  s_mov_b64 exec, 1")
        a("  global_store_dwordx4 v1, v[4:7], s[14:15]")
        a("  s_getreg_b32 s44, hwreg(HW_REG_XCC_ID)")
        a("  s_getreg_b32 s45, hwreg(HW_REG_HW_ID)")
        a("  v_mov_b32 v2, s44")
        a("  v_mov_b32 v3, s45")
        a("  global_store_dwordx2 v1, v[2:3], s[14:15] offset:16")
        if stamps == 4:
            a("  s_mov_b64 exec, -1")
            a("  s_mul_i32 s30, s30, 480")
            a("  s_add_u32 s30, s30, 0x100000")
            a("  s_add_u32 s14, s14, s30")
            a("  s_addc_u32 s15, s15, 0")
            a("  v_lshlrev_b32 v1, 2, v0")
            a(f"  global_store_dword v1, v{vTr}, s[14:15]")
            a(f"  global_store_dword v1, v{vTr+1}, s[14:15] offset:256")
        if stamps == 3:
            a("  s_add_u32 s14, s14, 0x100000")
            a("  s_addc_u32 s15, s15, 0")
            for i in range(8): a(f"  v_mov_b32 v{12+i}, s{50+2*i}")
            a("  global_store_dwordx4 v1, v[12:15], s[14:15]")
            a("  global_store_dwordx4 v1, v[16:19], s[14:15] offset:16")
    a("L_done:")
    a("  s_endpgm")
    L.extend(outl)

    cks = [int(x) for x in str(ck).split(".")]
    gps = [int(x) for x in str(gp).split(".")] if str(gp) else []
    assert len(gps) == len(cks) - 1 and len(cks) <= 7 and nrep in (64, 128)
    pack = lambda v: sum(x << (8 * i) for i, x in enumerate(v))
    ct = pack(cks + [0]); gt = pack(gps)
    TA = 64 + T0 + nt + 1
    assert bc + 1 < TA <= 127
    hG, hG2, hH, hH2 = 12, 13, 14, 15
    hU, hS, hR, hA, hT = 16, 28, 40, 52, 76
    def slot_loads(d, h, h2):
        a(f"  global_load_dwordx4 {r4(d)}, v{h}, s[14:15] {HF}")
        a(f"  global_load_dwordx4 {r4(d+4)}, v{h}, s[14:15] offset:1024 {HF}")
        a(f"  global_load_dwordx2 {r2(d+8)}, v{h2}, s[14:15] {HF}")
    def put_cw():
        a("  s_or_b32 s30, s29, s28")
        a("  v_mov_b32 v2, s30")
        a("  ds_write_b32 v1, v2")
    a("L_helper:")
    duty()
    a(f"  v_mov_b32 v1, {CW}")
    a("  s_lshl_b32 s29, s38, 16")
    a("  s_mov_b32 s28, 0")
    put_cw()
    a("  s_lshl_b32 s26, s2, 11")
    a(f"  v_lshl_add_u32 v{hG}, v0, 4, s26")
    a(f"  v_xor_b32 v{hH}, 0x800, v{hG}")
    a("  s_lshl_b32 s27, s2, 7")
    a("  s_add_u32 s26, s27, 0x80000")
    a(f"  v_lshrrev_b32 v{hG2}, 4, v0")
    a(f"  v_lshl_add_u32 v{hG2}, v{hG2}, 3, s26")
    a(f"  v_xor_b32 v{hH2}, 0x80, v{hG2}")
    if spoll: a("  s_xor_b32 s34, s26, 0x80")
    a("  s_add_u32 s26, s27, 0x90000")
    a("  v_mov_b32 v6, s26")
    a("  v_xor_b32 v7, 0x80, v6")
    a("  s_mov_b32 s26, 0xa0000")
    a("  v_lshl_add_u32 v3, v0, 7, s26")
    if ref2 >= 0:
        a(f"  s_cmp_eq_u32 s2, {ref2}")
        a(f"  s_cselect_b32 s20, {roff:#x}, 0")
        a("  v_add_u32 v3, s20, v3")
    a("  v_add_u32 v4, 0x2000, v3")
    a(f"  s_and_b32 s20, s27, {(nrep - 1) * 128:#x}")
    a("  s_add_u32 s20, s20, s26")
    a(f"  s_mov_b32 s16, {ct & 0xffffffff:#x}")
    a(f"  s_mov_b32 s17, {ct >> 32:#x}")
    a(f"  s_mov_b32 s18, {gt & 0xffffffff:#x}            ; gains")
    a(f"  s_mov_b32 s19, {gt >> 32:#x}")
    a("  s_mov_b32 s24, 0")
    a("  s_mov_b32 s25, 0")
    a("  s_mov_b32 s32, 0")
    a("  s_mov_b32 s39, 0")
    a("  s_lshr_b32 s31, s2, 2")
    a(f"  s_add_u32 s31, s31, {be}")
    a("  s_waitcnt lgkmcnt(0)")
    a("  s_add_u32 s4, s14, s20")
    a("  s_addc_u32 s5, s15, 0")
    if spoll:
        a("  s_add_u32 s6, s14, s34")
        a("  s_addc_u32 s7, s15, 0")
    a("  s_load_dword s21, s[4:5], 0 glc")
    if ref2 >= 0: a(f"  s_load_dword s8, s[4:5], {roff:#x} glc")
    if lsnap:
        a("  s_waitcnt lgkmcnt(0)")
    slot_loads(hU, hG, hG2)
    slot_loads(hS, hH, hH2)
    a(f"  s_cmp_eq_u32 s2, {ref}")
    a("  s_cselect_b32 s33, 1, 0")
    if ref2 >= 0:
        a(f"  s_cmp_eq_u32 s2, {ref2}")
        a("  s_cselect_b32 s33, 1, s33")
        a("  s_mov_b64 s[10:11], s[16:17]")
        a("  s_cmp_eq_u32 s33, 1")
    a("  s_cbranch_scc0 L_hnot")
    if ref2 < 0: a(f"  s_mov_b32 s32, {cks[-1] + (1 if fast else 2) + fm - rfm}")
    a(f"  global_load_dword v5, v3, s[14:15] {HF}")
    if nrep > 64: a(f"  global_load_dword v11, v4, s[14:15] {HF}")
    a("L_hnot:")
    a("L_hloop:")
    a("  s_barrier")
    a("  s_add_u32 s24, s24, 1")
    a("  s_waitcnt vmcnt(0) lgkmcnt(0)")
    a("  s_mov_b64 exec, 1")
    a("  s_cmp_eq_u32 s24, 1")
    a("  s_cbranch_scc0 L_he1")
    if not fast: a("  s_mov_b32 s35, s21")
    a(f"  global_load_dword v8, v6, s[14:15] {HF}")
    a(f"  global_load_dword v9, v7, s[14:15] {HF}")
    a("L_he1:")
    a("  s_cmp_eq_u32 s24, s31")
    a("  s_cbranch_scc0 L_he2")
    if not noecho: a("  v_add_u32 v8, 1, v8")
    if noecho == 2:
        a("  s_and_b32 s30, s2, 1")
        a("  v_add_u32 v8, s30, v8")
    a(f"  global_store_dword v6, v8, s[14:15] {HF}")
    a("L_he2:")
    a(f"  s_cmp_eq_u32 s24, {bc}")
    a("  s_cbranch_scc0 L_he3")
    a(f"  global_load_dword v10, v7, s[14:15] {HF}")
    a("L_he3:")
    a(f"  s_cmp_eq_u32 s24, {bc + 1}")
    a("  s_cbranch_scc0 L_he4")
    a("  v_cmp_ne_u32 vcc, v9, v10")
    a("  s_mov_b32 s39, vcc_lo")
    a("L_he4:")
    a("  s_mov_b64 exec, -1")
    a(f"  s_cmp_eq_u32 s24, {TA}")
    a("  s_cbranch_scc1 L_hpub")
    a("L_hpubd:")
    a("  s_cmp_eq_u32 s33, 1")
    a("  s_cbranch_scc1 L_href")
    a("L_hread:")
    a("  s_cmp_lg_u32 s32, 0")
    a("  s_cbranch_scc1 L_hwait")
    def look():
        a("  ; look only from shortly before the next announcement is due")
        a("  s_lshl_b32 s30, s25, 3")
        a("  s_lshr_b64 s[22:23], s[16:17], s30")
        a("  s_and_b32 s22, s22, 0xff")
        a(f"  s_add_u32 s23, s24, {pw}")
        a("  s_cmp_lt_u32 s23, s22")
        a("  s_cbranch_scc1 L_hnext")
        a("  s_load_dword s35, s[4:5], 0 glc")
        if ref2 >= 0: a(f"  s_load_dword s9, s[4:5], {roff:#x} glc")
    if fast:
        look()
        a("  s_waitcnt lgkmcnt(0)")
    a("  s_sub_u32 s30, s35, s21")
    if ref2 >= 0:
        assert fast
        a("  s_sub_u32 s9, s9, s8")
        a("  s_min_u32 s30, s30, s9")
    if sub > 1:
        assert fast and ref2 < 0
        for i in range(1, sub):
            a(f"  s_mov_b32 s9, {i - 1}")
            a("  s_cmp_eq_u32 s30, s25")
            a("  s_cbranch_scc0 L_hsaw0" if sl and i == 1 else "  s_cbranch_scc0 L_hsaw")
            if sl and i == 1:
                a(f"  s_cmp_lt_u32 s25, {len(cks) - sl}")
                a("  s_cbranch_scc1 L_hsame")
            a("  s_load_dword s35, s[4:5], 0 glc")
            a("  s_waitcnt lgkmcnt(0)")
            a("  s_sub_u32 s30, s35, s21")
        a(f"  s_mov_b32 s9, {sub - 1}")
    a("  s_cmp_eq_u32 s30, s25")
    a("  s_cbranch_scc1 L_hsame")
    if sub > 1 and sl:
        a("  s_branch L_hsaw")
        a("L_hsaw0:")
        a(f"  s_cmp_lt_u32 s25, {len(cks) - sl}")
        a(f"  s_cselect_b32 s9, {so}, s9")
    a("L_hsaw:")
    a(f"  s_min_u32 s25, s30, {len(cks)}")
    a("  s_lshl_b32 s30, s25, 3")
    a("  s_sub_u32 s30, s30, 8")
    a("  s_lshr_b64 s[22:23], s[16:17], s30")
    a("  s_and_b32 s22, s22, 0xff")
    a("  s_sub_i32 s22, s22, s24")
    a(f"  s_add_i32 s22, s22, {(0 if fast else 1) + lo}")
    if sub > 1:
        a(f"  s_mul_i32 s22, s22, {sub}")
        a("  s_sub_i32 s22, s22, s9")
        if so: a(f"  s_add_i32 s22, s22, {so}")
    a(f"  s_cmp_eq_u32 s25, {len(cks)}")
    a("  s_cbranch_scc1 L_hfin")
    a("  s_lshr_b64 s[26:27], s[18:19], s30")
    a("  s_and_b32 s26, s26, 0xff")
    a("  s_mul_i32 s26, s26, s22")
    if gi:
        a(f"  s_mul_i32 s22, s22, {gi}")
        a("  s_add_i32 s38, s38, s22")
    a("  s_add_i32 s30, s38, s26")
    a("  s_max_i32 s30, s30, 0")
    a(f"  s_min_i32 s30, s30, {min(umax, (lev - 1) * 256)}")
    a("  s_lshl_b32 s29, s30, 16")
    put_cw()
    a("L_hsame:")
    if not fast: look()
    a("L_hnext:")
    a("  s_cmp_eq_u32 s24, 64")
    a("  s_cbranch_scc0 L_hnb")
    a("  s_barrier")
    a("L_hnb:")
    a("  s_cmp_lt_u32 s24, 127")
    a("  s_cbranch_scc1 L_hloop")
    a("  s_branch L_hget")
    a("L_hfin:")
    a(f"  s_mul_i32 s22, s22, {fk}")
    a("  s_ashr_i32 s22, s22, 1")
    a("  s_sub_i32 s32, s24, s22")
    a(f"  s_add_i32 s32, s32, {fm}")
    a("  s_max_i32 s32, s32, 1")
    a("L_hwait:")
    a("  s_cmp_lt_i32 s24, s32")
    a("  s_cbranch_scc1 L_hnext")
    a("  s_mov_b32 s28, 1")
    put_cw()
    a("  s_branch L_hnext")
    a("L_href:")
    tb, nxt = ("s[10:11]", "L_hread") if ref2 >= 0 else ("s[16:17]", "L_hwait")
    a(f"  s_and_b32 s30, {'s10' if ref2 >= 0 else 's16'}, 0xff")
    a("  s_cmp_eq_u32 s30, s24")
    a(f"  s_cbranch_scc0 {nxt}")
    a("  v_add_u32 v5, 1, v5")
    a(f"  global_store_dword v3, v5, s[14:15] {HF}")
    if nrep > 64:
        a("  v_add_u32 v11, 1, v11")
        a(f"  global_store_dword v4, v11, s[14:15] {HF}")
    a(f"  s_lshr_b64 {tb}, {tb}, 8")
    a(f"  s_branch {'L_hnext' if ref2 >= 0 else nxt}")
    a("L_hpub:")
    a("  v_lshlrev_b32 v2, 5, v0")
    a(f"  ds_read_b128 {r4(hA)}, v2 offset:{DX}")
    a(f"  ds_read_b128 {r4(hA+4)}, v2 offset:{DX + 16}")
    a(f"  ds_read_b128 {r4(hA+12)}, v2 offset:{DX + 2048}")
    a(f"  ds_read_b128 {r4(hA+16)}, v2 offset:{DX + 2048 + 16}")
    a("  v_lshrrev_b32 v2, 4, v0")
    a("  v_lshlrev_b32 v2, 5, v2")
    a(f"  ds_read_b64 {r2(hA+8)}, v2 offset:{DL}")
    a(f"  ds_read_b64 {r2(hA+20)}, v2 offset:{DL + 512}")
    if not notag:
        for i in range(10): a(f"  v_not_b32 v{hU+i}, v{hU+i}")
    a("  s_waitcnt lgkmcnt(0)")
    for i in list(range(8)) + [9]: a(f"  v_add_f32 v{hA+i}, v{hA+i}, v{hA+12+i}")
    for i in range(10): a(f"  v_bfi_b32 v{hU+i}, 1, v{hU+i}, v{hA+i}")
    if not nohand:
        a(f"  global_store_dwordx4 v{hG}, {r4(hU)}, s[14:15] {HF}")
        a(f"  global_store_dwordx4 v{hG}, {r4(hU+4)}, s[14:15] offset:1024 {HF}")
        a("  s_mov_b32 exec_lo, 0x00010001")
        a("  s_mov_b32 exec_hi, 0x00010001")
        a(f"  global_store_dwordx2 v{hG2}, {r2(hU+8)}, s[14:15] {HF}")
        a("  s_mov_b64 exec, -1")
    a("  s_branch L_hpubd")
    a("L_hget:")
    if spoll: a(f"  v_readfirstlane_b32 s21, v{hS+8}")
    a("  s_xor_b32 s26, s2, 1")
    a("  v_mov_b32 v9, s26")
    a("  s_mov_b32 s25, 0")
    if nohand: a("  s_branch L_hhave")
    a("  s_cmp_lg_u32 s39, 0")
    a("  s_cbranch_scc1 L_hpoll")
    a("  v_mov_b32 v8, s2")
    a("  v_mov_b32 v10, 1")
    a("  s_waitcnt vmcnt(0)")
    a("  s_mov_b64 exec, 1")
    a(f"  global_store_byte v8, v10, s[12:13] {HF}")
    a("  s_mov_b64 exec, -1")
    a("L_hpoll:")
    a("  s_add_u32 s25, s25, 1")
    a("  s_bitcmp1_b32 s25, 23")
    a("  s_cbranch_scc1 L_hhave")
    a("  s_cmp_lg_u32 s39, 0")
    a("  s_cbranch_scc1 L_htag")
    a(f"  global_load_ubyte v{hT}, v9, s[12:13] {HF}")
    a("  s_waitcnt vmcnt(0)")
    a(f"  v_cmp_ne_u32 vcc, 0, v{hT}")
    a("  s_cbranch_vccz L_htag")
    slot_loads(hR, hH, hH2)
    a("  s_waitcnt vmcnt(0)")
    a("  s_branch L_hhave")
    a("L_htag:")
    if spoll:
        a("  s_load_dword s35, s[6:7], 0 glc")
        a("  s_waitcnt lgkmcnt(0)")
        a("  s_xor_b32 s35, s35, s21")
        a("  s_bitcmp1_b32 s35, 0")
        a("  s_cbranch_scc0 L_hpoll")
    slot_loads(hR, hH, hH2)
    a("  s_waitcnt vmcnt(0)")
    for i in range(10): a(f"  v_xor_b32 v{hT+i}, v{hR+i}, v{hS+i}")
    for i in range(5): a(f"  v_and_b32 v{hT+i}, v{hT+i}, v{hT+5+i}")
    a(f"  v_and_b32 v{hT}, v{hT}, v{hT+1}")
    a(f"  v_and_b32 v{hT+2}, v{hT+2}, v{hT+3}")
    a(f"  v_and_b32 v{hT}, v{hT}, v{hT+4}")
    a(f"  v_and_b32 v{hT}, v{hT}, v{hT+2}")
    a(f"  v_and_b32 v{hT}, 1, v{hT}")
    a(f"  v_cmp_eq_u32 vcc, 0, v{hT}")
    a("  s_cbranch_vccnz L_hpoll")
    a("L_hhave:")
    for i in range(10): a(f"  v_and_b32 v{hR+i}, -2, v{hR+i}")
    mo, lo_, mr, lr = hA + 8, hA + 9, hR + 8, hR + 9
    a(f"  v_min_f32 v2, v{mo}, v{mr}")
    a(f"  v_sub_f32 v{mo}, v2, v{mo}")
    a(f"  v_sub_f32 v{mr}, v2, v{mr}")
    a(f"  v_exp_f32 v{mo}, v{mo}")
    a(f"  v_exp_f32 v{mr}, v{mr}")
    a("  v_lshlrev_b32 v3, 5, v0")
    a(f"  v_mul_f32 v2, v{mo}, v{lo_}")
    a(f"  v_fmac_f32 v2, v{mr}, v{lr}")
    a("  v_rcp_f32 v2, v2")
    a("  v_lshlrev_b32 v4, 2, v0")
    a(f"  v_mul_f32 v{mo}, v{mo}, v2")
    a(f"  v_mul_f32 v{mr}, v{mr}, v2")
    for i in range(8): a(f"  v_mul_f32 v{hR+i}, v{mr}, v{hR+i}")
    a(f"  ds_write_b32 v4, v{mo} offset:{FA}")
    a(f"  ds_write_b128 v3, {r4(hR)} offset:{ZA}")
    a(f"  ds_write_b128 v3, {r4(hR+4)} offset:{ZA + 16}")
    a("  s_waitcnt lgkmcnt(0)")
    a("  s_barrier")
    a("  s_endpgm")
    nv4 = (nv + 3) // 4 * 4
    a(f""".section .rodata,"a"
.p2align 6
.amdhsa_kernel {KNAME}
  .amdhsa_next_free_vgpr {nv4}
  .amdhsa_next_free_sgpr {72 if stamps else 48}
  .amdhsa_accum_offset {nv4}
  .amdhsa_group_segment_fixed_size 0
  .amdhsa_kernarg_size 48
  .amdhsa_user_sgpr_count 2
  .amdhsa_user_sgpr_kernarg_segment_ptr 1
  .amdhsa_system_sgpr_workgroup_id_x 1
  .amdhsa_float_denorm_mode_32 3
.end_amdhsa_kernel""")
    return HEADER + "\n".join(L) + "\n"

def parse(spec):
    kw = {}
    for kv in spec.split(","):
        k_, v_ = kv.split("=")
        if k_ == 'flags': v_ = '' if v_ == 'none' else v_.replace("+", " ")
        elif k_ not in ('order', 'cm', 'hm', 'ck', 'gp') and v_.lstrip("-").isdigit(): v_ = int(v_)
        kw[k_] = v_
    return kw
if __name__ == "__main__":
    for spec in sys.argv[1:]:
        name = "k14_" + spec.replace(",", "_").replace("=", "").replace("+", "")[:80] + ".s"
        open(name, "w").write(gen(**parse(spec))); print(name)
```

```python
import sys, math

KNAME = "standalone__softmax_full_bidir__sampling_kernel"
HEADER = """; Kernarg layout for this problem (48 bytes, ptrs only, base s[0:1]):
;
"""
C_SCALE = 0x3DB8AA3B
DP = "row_mask:0xf bank_mask:0xf"
HF = "sc0 sc1"
W1 = '16.12x16.9x12.9x11x12.9x11x12x13x14x16x18x19x20.12x13.9x11x15.9x11x18x19.18.11x12x13x19x20.9x12x13x14x16x17x20.10x12x13x14x16x18x20'
W2 = '16.12x16.9x12.9x11x12.9x11x12x13x14x16x18x19x20.12x13.9x11x15.9x11x12x15x18x19.10x11x14x16x18x19.18.10x12x13x14x16x18x20.9x11x13x14x15x16x17x20'
WXB = '15.11x12x15.9x10x13x17x20.11x17x20.9x15x19.9x12x15x16x18x19x20.11x12x19.9x12x17x18'
def r4(b): return f"v[{b}:{b+3}]"
def r2(b): return f"v[{b}:{b+1}]"
def mask_of(t): return sum(1 << int(b) for b in t.split("x") if b != "0")

def gen(depth=9, lev=3, deep=14, d0=14, u0=230, ue=35, uq=0, ur=0, umax=9999, order=W2, cm='7x8', hm='8', p=3,
        ck='30.55.80.102.118', gp='80.80.80.80', gi=0, lo=1, fm=4, fk=6, ref=5, nrep=128, pw=3,
        be=8, bc=90, nt=2, tie=2, spoll=0, noecho=0, notag=0, nohand=0, pair=0, nocomp=0, fast=1, jr=12, qk=0, lsnap=0, ref2=-1, roff=0x4000, sub=1, so=0, sl=0, rfm=2, wmap=0, wx=WXB, guard='7', bl=1, gto=8, stamps=0, flags='nt'):
    L = []; a = L.append
    NWG, nw = 256, 2
    km = [mask_of(t) for t in str(order).split(".")]
    assert len(km) == 12
    basis = []
    for m_ in km:
        assert m_ & 0x1ff == 0 and m_ < (1 << 21)
        for b in basis: m_ = min(m_, m_ ^ b)
        assert m_, "key masks must be independent"
        basis.append(m_); basis.sort(reverse=True)
    CM, HM = mask_of(str(cm)), mask_of(str(hm))
    assert {CM, HM} < {128, 256, 384} and CM != HM and p == 3
    LM, TM = km[:2], km[2:]
    KT = TM[:4]; KT[p] = HM
    HI = TM[4:]
    UNIT = 512
    NK = 1024; N = 2048; RU = 16
    dmax = max(deep, d0, depth + lev - 1)
    assert dmax == 14
    T0 = 64 - 2 * nt
    PAD = 2048
    MX = PAD + 65536 + 1536
    CW = MX + 512
    lds = CW + 16
    DX, DL, EX, ZA, FA = PAD, PAD + 4096, PAD + 6144, PAD + 10240, PAD + 12288
    vK, vV, vM0, vM1 = 1, 2, 3, 4
    vm, vmc, vl, vs, vt0, vt1, vp = 5, 6, 7, 8, 9, 10, 11
    vX = 12
    vCur, vAd, vRd2, vRdP = 16, 17, 19, 20
    vCWa, vCWv = 22, 23
    vQ = 24
    vA = 32
    vW, vRd, vsr, vpp = 40, 41, 42, 43
    vD, vO, vF = 45, 46, 47
    vML = 48
    vTr = 50
    vS = 52
    vB = vS
    vR = 84
    nv = vR + RU * 4
    cur = [depth]
    uid = [0]
    def slot(n): return vR + (n % RU) * 4
    def mark(i):
        if stamps == 3: a(f"  s_memrealtime s[{50+2*i}:{51+2*i}]")
    def comb(j, ms):
        c = 0
        for i, m_ in enumerate(ms):
            if j >> i & 1: c ^= m_
        return c
    def xor_bit(dst, src, bit, m_):
        a(f"  v_bfe_i32 v6, v{src}, {bit}, 1")
        a(f"  v_and_b32 v6, {m_:#x}, v6")
        a(f"  v_xor_b32 v{dst}, v{dst}, v6")
    def duty():
        a("  ; loads in flight above the minimum, in 1/256: the dies differ slightly in latency")
        a("  s_getreg_b32 s26, hwreg(HW_REG_XCC_ID)")
        a("  s_bitcmp0_b32 s26, 0")
        a(f"  s_cselect_b32 s38, {ue}, 0")
        a(f"  s_add_u32 s38, s38, {u0}")
        if uq:
            a("  s_bitcmp1_b32 s26, 2")
            a(f"  s_cselect_b32 s26, {uq}, 0")
            a("  s_add_u32 s38, s38, s26")
        if ur:
            a(f"  s_cmp_eq_u32 s2, {ref}")
            a(f"  s_cselect_b32 s26, {ur}, 0")
            a("  s_sub_u32 s38, s38, s26")

    a(f"; @launch grid=({NWG},1,1) block=(192,1,1) lds={lds}")
    a('.amdgcn_target "amdgcn-amd-amdhsa--gfx950"')
    a(".text")
    a(f".globl {KNAME}")
    a(".p2align 8")
    a(f".type {KNAME},@function")
    a(f"{KNAME}:")
    a(f"  s_cmp_ge_u32 s2, {NWG}")
    a("  s_cbranch_scc1 L_done")
    a("  s_load_dwordx4 s[4:7], s[0:1], 0       ; q, k")
    a("  s_load_dwordx4 s[8:11], s[0:1], 16     ; v, out")
    a("  s_load_dwordx4 s[12:15], s[0:1], 32")
    if stamps: a("  s_memrealtime s[40:41]")
    a("  v_lshrrev_b32 v7, 6, v0")
    a("  v_and_b32 v0, 63, v0                   ; lane")
    a("  v_readfirstlane_b32 s3, v7             ; wave")
    a("  s_cmp_eq_u32 s3, 2")
    a("  s_cbranch_scc1 L_helper")
    a("  v_and_b32 v8, 3, v0")
    a("  v_lshlrev_b32 v8, 4, v8")
    xor_bit(8, 0, 4, 64)
    xor_bit(8, 0, 5, CM)
    xor_bit(8, 7, 0, HM)
    a("  v_bfe_u32 v6, v0, 2, 2")
    a("  v_lshl_or_b32 v9, v6, 9, v8")
    a(f"  v_xor_b32 v10, {HM:#x}, v9")
    a(f"  v_mov_b32 v{vK}, v8")
    xor_bit(vK, 0, 2, LM[0])
    xor_bit(vK, 0, 3, LM[1])
    xor_bit(vK, 7, 0, TM[p])
    WX = [mask_of(t) for t in str(wx).split(".")] if str(wx) else []
    if any(WX):
        a("  ; workgroups start at different points of the same walk")
        a("  s_mov_b32 s43, 0")
        for i, m_ in enumerate(WX):
            assert m_ & 0x1ff == 0
            if m_:
                a(f"  s_bitcmp1_b32 s2, {i}")
                a(f"  s_cselect_b32 s26, {m_:#x}, 0")
                a("  s_xor_b32 s43, s43, s26")
        a(f"  v_xor_b32 v{vK}, s43, v{vK}")
    a(f"  v_mov_b32 v{vCur}, v{vK}")
    if wmap:
        a("  ; heads are dealt so that workgroups that share a die read neighbouring pages")
        a("  s_bfe_u32 s26, s2, 0x20001")
        a("  s_lshr_b32 s30, s2, 3")
        if wmap == 1:
            a("  s_lshl_b32 s26, s26, 5")
            a("  s_or_b32 s30, s30, s26")
        else:
            a(f"  s_lshl_b32 s26, s26, {wmap}")
            a(f"  s_and_b32 s27, s30, {(1 << wmap) - 1}")
            a("  s_or_b32 s26, s26, s27")
            a(f"  s_lshr_b32 s30, s30, {wmap}")
            a(f"  s_lshl_b32 s30, s30, {wmap + 2}")
            a("  s_or_b32 s30, s30, s26")
        a("  s_and_b32 s26, s2, 1")
        a("  s_lshl_b32 s28, s30, 1")
        a("  s_or_b32 s28, s28, s26")
        a("  s_lshl_b32 s28, s28, 21")
    else:
        a("  s_lshl_b32 s28, s2, 21")
        a("  s_lshr_b32 s30, s2, 1")
    a("  s_lshl_b32 s30, s30, 11")
    a("  s_mov_b32 s25, 0")
    a("  s_mov_b32 s24, 1")
    a("  s_mov_b32 s18, 0x200000")
    a("  s_mov_b32 s19, 0x20000")
    a("  s_mov_b32 s34, 2048")
    a("  s_mov_b32 s35, 0x20000")
    a("  s_waitcnt lgkmcnt(0)")
    mark(0)
    a("  s_add_u32 s16, s6, s28")
    a("  s_addc_u32 s17, s7, 0")
    a("  s_and_b32 s17, s17, 0xffff")
    def q_loads():
        a("  s_add_u32 s32, s4, s30")
        a("  s_addc_u32 s33, s5, 0")
        a("  s_and_b32 s33, s33, 0xffff")
        a(f"  buffer_load_dwordx4 {r4(vQ)}, v9, s[32:35], 0 offen")
        a(f"  buffer_load_dwordx4 {r4(vQ+4)}, v10, s[32:35], 0 offen")
    if not qk: q_loads()

    def addr(n):
        j = n % RU
        c = comb(j, KT if n < NK else TM[:4])
        r = vCur
        if j:
            r = vAd + (j & 1)
            a(f"  v_xor_b32 v{r}, {c:#x}, v{vCur}")
        return r
    def after_issue(n):
        j = n % RU
        if j == 1: a("  s_add_u32 s25, s25, s24")
        if 2 <= j < 8:
            a(f"  s_bitcmp1_b32 s25, {j-2}")
            if j == 2:
                a(f"  s_cselect_b32 s31, {HI[0]:#x}, 0")
            else:
                a(f"  s_cselect_b32 s26, {HI[j-2]:#x}, 0")
                a("  s_xor_b32 s31, s31, s26")
        if j == jr and n >= RU: a(f"  ds_read_b32 v{vCWv}, v{vCWa}")
        if j == jr + 3 and n >= RU:
            a("  s_waitcnt lgkmcnt(0)")
            a(f"  v_readfirstlane_b32 s38, v{vCWv}")
            if stamps == 4:
                a("  s_add_u32 s52, s52, 1")
                a("  s_mov_b32 m0, s52")
                a(f"  v_writelane_b32 v{vTr if n < NK else vTr + 1}, s50, m0")
    def kinfo(x):
        j = x % RU
        return j >> 3, j & 7
    def reduce_k(x, n0, nops):
        _, gi_ = kinfo(x)
        S = vS + gi_ * 4
        if nops: a(f"  s_nop {nops - 1}")
        a(f"  v_mov_b32_dpp v{vt0}, v{S} quad_perm:[0,0,0,0] {DP}")
        a(f"  v_mov_b32_dpp v{vt1}, v{S+2} quad_perm:[2,2,2,2] {DP}")
        a("  s_nop 0")
        a(f"  v_add_f32_dpp v{vt0}, v{S+1}, v{vt0} quad_perm:[1,1,1,1] {DP}")
        a(f"  v_add_f32_dpp v{vt1}, v{S+3}, v{vt1} quad_perm:[3,3,3,3] {DP}")
        a(f"  v_add_f32 v{vs}, v{vt0}, v{vt1}")
        a(f"  v_max_f32 v{vm}, v{vm}, v{vs}")
        off = (x // RU - n0 // RU) * 1024 + (gi_ >> 2) * 256 + (gi_ & 3) * 4 + PAD
        a(f"  ds_write_b32 v{vW}, v{vs} offset:{off}")
    def lds_read(b, n0):
        rel = b - (n0 - NK) // 4
        assert -1 <= rel < 4
        r = vRdP if rel < 0 else (vRd2 if rel & 2 else vRd)
        a(f"  ds_read_b32 v{vsr}, v{r} offset:{(rel & 3) * 256 + PAD - 512}")
    def prep(b):
        a(f"  v_add_f32 v{vl}, v{vl}, v{vp}")
        a("  s_waitcnt lgkmcnt(0)")
        a(f"  v_fma_f32 v{vp}, v{vsr}, s36, v{vmc}")
        a(f"  v_exp_f32 v{vp}, v{vp}")
        a("  s_nop 0")
        a(f"  v_cvt_pk_bf16_f32 v{vpp + (b & 1)}, v{vp}, v{vp}")
    def mk_x(y):
        X = vX + (y & 1) * 2; i = y & 3; pp = vpp + ((y >> 2) & 1)
        a(f"  v_and_b32_dpp v{X}, v{pp}, v{vM0} quad_perm:[{i},{i},{i},{i}] {DP}")
        a(f"  v_and_b32_dpp v{X+1}, v{pp}, v{vM1} quad_perm:[{i},{i},{i},{i}] {DP}")
    def transition(n0):
        a("  ; scores done: row maximum over the workgroup's keys")
        a(f"  v_mov_b32 v{vt0}, v{vm}")
        a(f"  s_lshl_b32 s26, s3, 8")
        a(f"  s_add_u32 s26, s26, {MX}")
        a(f"  v_permlane32_swap_b32 v{vt0}, v{vm}")
        a(f"  v_max_f32 v{vm}, v{vm}, v{vt0}")
        a(f"  v_mov_b32 v{vt0}, v{vm}")
        a(f"  v_lshl_add_u32 v{vt1}, v0, 2, s26")
        a(f"  v_xor_b32 v{vs}, 0x100, v{vt1}")
        a(f"  v_permlane16_swap_b32 v{vt0}, v{vm}")
        a(f"  v_max_f32 v{vm}, v{vm}, v{vt0}")
        a(f"  ds_write_b32 v{vt1}, v{vm}")
        a("  s_waitcnt lgkmcnt(0)")
        a("  s_barrier")
        a(f"  ds_read_b32 v{vt0}, v{vs}")
        lds_read(0, n0)
        a("  s_waitcnt lgkmcnt(1)")
        a(f"  v_max_f32 v{vm}, v{vm}, v{vt0}")
        a(f"  v_mul_f32 v{vmc}, s36, v{vm}")
        a(f"  v_sub_f32 v{vmc}, 0, v{vmc}")
        a(f"  v_and_b32 v{vmc}, -2, v{vmc}")
        prep(0)
        lds_read(1, n0)
        a("  s_nop 0")
        mk_x(0)
    outl = []
    def glue():
        uid[0] += 1; u = uid[0]
        a("  s_cmp_lg_u32 s39, 0")
        a(f"  s_cbranch_scc1 L_glue{u}")
        a(f"L_back{u}:")
        o = outl.append
        o(f"L_glue{u}:")
        o("  s_cmp_eq_u32 s39, 2")
        o("  s_mov_b32 s39, 0")
        o(f"  s_cbranch_scc1 L_dump{u}")
        o(f"  v_cndmask_b32 v{vl}, v{vl}, 0, s[44:45]")
        o("  s_nop 3")
        for i in range(8): o(f"  v_cndmask_b32 v{vB+i}, 0, v{vA+i}, s[44:45]")
        for i in range(8): o(f"  v_cndmask_b32 v{vA+i}, v{vA+i}, 0, s[44:45]")
        o("  s_nop 0")
        o(f"  s_branch L_back{u}")
        o(f"L_dump{u}:")
        o(f"  v_add_f32_dpp v{vt0}, v{vl}, v{vl} quad_perm:[1,0,3,2] {DP}")
        o("  s_nop 1")
        o(f"  v_add_f32_dpp v{vt0}, v{vt0}, v{vt0} quad_perm:[2,3,0,1] {DP}")
        o(f"  v_mov_b32 v{vt1}, v{vt0}")
        o(f"  ds_write_b128 v{vD}, {r4(vA)} offset:{DX}")
        o(f"  ds_write_b128 v{vD}, {r4(vA+4)} offset:{DX + 16}")
        o(f"  v_permlane32_swap_b32 v{vt0}, v{vt1}")
        o(f"  v_add_f32 v{vt0}, v{vt0}, v{vt1}")
        o(f"  v_mov_b32 v{vt1}, v{vt0}")
        o("  s_nop 1")
        o(f"  v_permlane16_swap_b32 v{vt0}, v{vt1}")
        o(f"  v_add_f32 v{vML+1}, v{vt0}, v{vt1}")
        o(f"  v_mov_b32 v{vML}, v{vmc}")
        o(f"  v_lshrrev_b32 v{vt0}, 2, v{vD}")
        o(f"  ds_write_b64 v{vt0}, {r2(vML)} offset:{DL}")
        o("  s_waitcnt lgkmcnt(0)")
        for i in range(8): o(f"  v_mov_b32 v{vA+i}, v{vB+i}")
        o("  s_nop 0")
        o(f"  s_branch L_back{u}")
    def compute(x, n0, issued, inloop, tight=0):
        if x < 0 or x >= N: return
        if nocomp and inloop: return
        if x < NK:
            half, gi_ = kinfo(x)
            S = vS + gi_ * 4
            if half == 0:
                a(f"  v_mfma_f32_16x16x32_bf16 {r4(S)}, {r4(slot(x))}, {r4(vQ)}, 0")
            else:
                a(f"  v_mfma_f32_16x16x32_bf16 {r4(S)}, {r4(slot(x))}, {r4(vQ+4)}, {r4(S)}")
            done = lambda z: z >= 0 and kinfo(z)[0] == 1
            if done(x - 1): reduce_k(x - 1, n0, 0 if done(x - 2) else max(5, tight))
            if x == NK - 1:
                reduce_k(x, n0, 1)
                transition(n0)
        else:
            y = x - NK
            X = vX + (y & 1) * 2
            if inloop and y % RU == 0: glue()
            if not issued: a("  s_nop 0")
            for half in range(2):
                acc = vA + half * 4
                a(f"  v_mfma_f32_16x16x16_bf16 {r4(acc)}, {r2(X)}, {r2(slot(x) + 2*half)}, {r4(acc)}")
            b = y >> 2
            if y + 1 < NK: mk_x(y + 1)
            if (y & 3) == 1 and b + 1 < 256:
                prep(b + 1)
                if b + 2 < 256: lds_read(b + 2, n0)
    def step(n, n0, inloop=False):
        x = n - dmax
        if n < N:
            r = addr(n)
            if n - cur[0] >= 0:
                a(f"  s_waitcnt vmcnt({cur[0] - 1})")
            srd = "s[16:19]" if n < NK else "s[20:23]"
            a(f"  buffer_load_dwordx4 {r4(slot(n))}, v{r}, {srd}, 0 offen {flags}")
            after_issue(n)
        elif x < N:
            a(f"  s_waitcnt vmcnt({N - 1 - x})")
        if x == 0: mark(1)
        if x == NK: mark(2)
        if n == RU - 1 and stamps == 3: a("  s_waitcnt lgkmcnt(0)")
        compute(x, n0, n < N, inloop)

    cur[0] = d0
    for n in range(RU):
        if n == d0:
            a("  ; V descriptor and lane offsets, constants, accumulators, LDS addresses")
            a("  s_add_u32 s20, s8, s28")
            a("  s_addc_u32 s21, s9, 0")
            a("  s_and_b32 s21, s21, 0xffff")
            a("  s_mov_b32 s22, 0x200000")
            a("  s_mov_b32 s23, 0x20000")
            a(f"  v_and_b32 v{vV}, 7, v0")
            a(f"  v_lshlrev_b32 v{vV}, 4, v{vV}")
            xor_bit(vV, 0, 3, CM)
            xor_bit(vV, 0, 4, LM[0])
            xor_bit(vV, 0, 5, LM[1])
            xor_bit(vV, 7, 0, HM ^ TM[p])
            if any(WX): a(f"  v_xor_b32 v{vV}, s43, v{vV}")
            a(f"  v_and_b32 v{vO}, 15, v0")
            a(f"  v_lshlrev_b32 v{vO}, 3, v{vO}")
            xor_bit(vO, 0, 4, CM)
            xor_bit(vO, 0, 5, 512)
            a("  s_and_b32 s27, s2, 1")
            a(f"  s_mul_i32 s26, s27, {HM}")
            a(f"  v_xor_b32 v{vO}, s26, v{vO}")
            a("  s_lshl_b32 s26, s3, 10")
            a(f"  v_lshl_add_u32 v{vF}, v0, 4, s26")
            a("  s_add_u32 s26, s26, s30")
            a(f"  v_add_u32 v{vO}, s26, v{vO}")
            a("  s_lshl_b32 s26, s3, 11")
            a(f"  v_lshl_add_u32 v{vD}, v0, 5, s26")
            a("  s_cmp_eq_u32 s27, s3")
            a("  s_cselect_b64 s[44:45], -1, 0")
            a(f"  s_mul_i32 s46, s3, {HI[0]:#x}")
            a(f"  s_xor_b32 s46, s46, {comb(T0, HI):#x}")
            a("  s_mov_b32 s39, 0")
            a("  s_mov_b32 s47, 1024")
            a(f"  s_mov_b32 s36, {C_SCALE:#x}")
            a("  v_and_b32 v5, 1, v0")
            a("  v_lshlrev_b32 v5, 4, v5")
            a("  v_mov_b32 v6, 0xffff")
            a("  v_lshlrev_b32 v5, v5, v6")
            a("  v_and_b32 v6, 2, v0")
            a("  v_cmp_eq_u32 vcc, 0, v6")
            a(f"  v_lshlrev_b32 v{vRd}, 2, v0")
            a(f"  v_and_b32 v{vW}, -16, v{vRd}")
            a(f"  v_cndmask_b32 v{vM0}, 0, v5, vcc")
            a(f"  v_cndmask_b32 v{vM1}, v5, 0, vcc")
            a("  v_lshlrev_b32 v6, 9, v7")
            a(f"  v_add_u32 v{vW}, v6, v{vW}")
            a(f"  v_add_u32 v{vRd}, 512, v{vRd}")
            a(f"  v_sub_u32 v{vRd2}, v{vRd}, v6")
            a(f"  v_add_u32 v{vRd}, v6, v{vRd}")
            a(f"  v_mov_b32 v{vm}, 0xff800000")
            a(f"  v_mov_b32 v{vl}, 0")
            a(f"  v_mov_b32 v{vp}, 0")
            for i in range(8):
                a(f"  v_mov_b32 v{vA+i}, 0")
            duty()
            a("  s_lshl_b32 s38, s38, 16")
            a("  s_lshl_b32 s37, s2, 16")
            a(f"  v_mov_b32 v{vCWa}, {CW}")
            if stamps == 4: a("  s_mov_b32 s52, 0")
        step(n, 0)
        if qk and n == 0: q_loads()
    def step2(n, n0, g):
        rs = []
        for i in range(g):
            j = (n + i) % RU
            c = comb(j, KT if n < NK else TM[:4])
            r = vCur
            if j:
                r = (17, 18, 21, 50)[i]
                a(f"  v_xor_b32 v{r}, {c:#x}, v{vCur}")
            rs.append(r)
        srd = "s[16:19]" if n < NK else "s[20:23]"
        for i in range(g):
            if pair & 1: a(f"  s_waitcnt vmcnt({cur[0] - 1})")
            elif i == 0: a(f"  s_waitcnt vmcnt({cur[0] - g})")
            a(f"  buffer_load_dwordx4 {r4(slot(n + i))}, v{rs[i]}, {srd}, 0 offen {flags}")
        for i in range(g): after_issue(n + i)
        for i in range(g):
            if i and n >= NK: a("  s_nop 0")
            compute(n + i - dmax, n0, i == 0, True, 8 if i else 0)
    def body(n0, d):
        cur[0] = d
        if pair:
            for n in range(n0, n0 + RU, 2): step2(n, n0, 2)
        else:
            for n in range(n0, n0 + RU): step(n, n0, True)
        a("  s_sub_u32 s29, s29, 1")
        a("  s_cmp_lg_u32 s29, 0")
    def sync(base):
        a(f"  v_xor_b32 v{vCur}, s31, v{base}")
        a("  s_barrier")
        if stamps == 4: a("  s_memrealtime s[50:51]")
    def bodies(name, n0):
        if name == "v":
            a("  s_bitcmp1_b32 s38, 0")
            a(f"  s_cbranch_scc1 L_{name}_c")
        a("  s_and_b32 s37, s37, 0xffffff")
        a("  s_add_u32 s37, s37, s38")
        a("  s_lshr_b32 s26, s37, 24")
        order_ = sorted(range(lev), key=lambda x: abs(x - (u0 + ue / 2) / 256))
        for x in order_[1:]:
            a(f"  s_cmp_eq_u32 s26, {x}")
            a(f"  s_cbranch_scc1 L_{name}_{x}")
        tails = [(f"{x}", depth + x) for x in order_]
        if name == "v": tails.append(("c", deep))
        for i, (tag, d) in enumerate(tails):
            a(f"L_{name}_{tag}:")
            body(n0, d)
            a(f"  s_cbranch_scc1 L_{name}")
            if i < len(tails) - 1: a(f"  s_branch L_{name}_e")
        a(f"L_{name}_e:")
    a("; ---- K phase")
    a(f"  s_mov_b32 s29, {NK // RU - 1}")
    a("L_k:")
    a(f"  v_add_u32 v{vW}, 1024, v{vW}")
    sync(vK)
    bodies("k", RU)
    a(f"  v_add_u32 v{vW}, 1024, v{vW}")
    sync(vV)
    cur[0] = depth + round((u0 + ue / 2) / 256 + 0.25)
    for n in range(NK, NK + RU): step(n, NK)
    a("; ---- V phase")
    a(f"  s_mov_b32 s29, {T0 - 1}")
    a("  s_mov_b32 s33, 0")
    a("L_v:")
    a(f"  v_mov_b32 v{vRdP}, v{vRd2}")
    a(f"  v_add_u32 v{vRd}, s47, v{vRd}")
    a(f"  v_add_u32 v{vRd2}, s47, v{vRd2}")
    a("L_v_go:")
    sync(vV)
    bodies("v", NK + RU)
    a(f"  v_mov_b32 v{vRdP}, v{vRd2}")
    a("  s_add_u32 s33, s33, 1")
    a("  s_cmp_eq_u32 s33, 3")
    a("  s_cbranch_scc1 L_drain")
    a("  s_mov_b32 s39, s33")
    a(f"  s_mov_b32 s29, {nt}")
    a("  s_mov_b32 s24, 2")
    a("  s_mov_b32 s47, 2048")
    a(f"  s_add_u32 s25, s3, {T0}")
    a("  s_mov_b32 s31, s46")
    a("  s_cmp_eq_u32 s33, 2")
    a("  s_cselect_b32 s26, -1, s44")
    a(f"  s_and_b32 s26, s26, {HM ^ (TM[p] if tie == 1 else 0):#x}")
    a(f"  v_xor_b32 v{vV}, s26, v{vV}")
    if tie == 1:
        a("  s_xor_b32 s26, s27, s33")
        a("  s_and_b32 s26, s26, 1")
        a("  s_lshl_b32 s26, s26, 9")
    else:
        a("  s_lshl_b32 s26, s3, 9")
    a("  s_lshl_b32 s32, s25, 10")
    a("  s_add_u32 s32, s32, 512")
    a(f"  v_lshl_add_u32 v{vRd}, v0, 2, s32")
    a(f"  v_subrev_u32 v{vRd2}, s26, v{vRd}")
    a(f"  v_add_u32 v{vRd}, s26, v{vRd}")
    a("  s_branch L_v_go")
    a("L_drain:")
    for n in range(N, N + dmax): step(n, N)
    if stamps: a("  s_memrealtime s[42:43]")
    for i in (3, 6): mark(i)
    a(f"  v_lshrrev_b32 v{vt0}, 5, v{vF}")
    a(f"  v_lshlrev_b32 v{vt0}, 2, v{vt0}")
    a("  s_nop 5")
    a(f"  ds_write_b128 v{vD}, {r4(vA)} offset:{EX}")
    a(f"  ds_write_b128 v{vD}, {r4(vA+4)} offset:{EX + 16}")
    a("  s_waitcnt lgkmcnt(0)")
    a("  s_barrier")
    mark(4)
    if stamps == 3: a("  s_waitcnt lgkmcnt(0)")
    a(f"  ds_read_b128 {r4(vB)}, v{vF} offset:{EX}")
    a(f"  ds_read_b128 {r4(vB+4)}, v{vF} offset:{EX + 2048}")
    a(f"  ds_read_b32 v{vt1}, v{vt0} offset:{FA}")
    a(f"  ds_read_b128 {r4(vB+8)}, v{vF} offset:{ZA}")
    a("  s_waitcnt lgkmcnt(2)")
    for i in range(4): a(f"  v_add_f32 v{vB+i}, v{vB+i}, v{vB+4+i}")
    a("  s_waitcnt lgkmcnt(0)")
    for i in range(4): a(f"  v_fma_f32 v{vB+i}, v{vB+i}, v{vt1}, v{vB+8+i}")
    a(f"  v_cvt_pk_bf16_f32 v{vB}, v{vB}, v{vB+1}")
    a(f"  v_cvt_pk_bf16_f32 v{vB+1}, v{vB+2}, v{vB+3}")
    a(f"  global_store_dwordx2 v{vO}, {r2(vB)}, s[10:11]")
    mark(5)
    if stamps == 2:
        a("  s_waitcnt vmcnt(0)")
        a("  s_memrealtime s[42:43]")
    if stamps == 3:
        a("  s_waitcnt vmcnt(0)")
        mark(7)
    if stamps:
        a(f"  s_mul_i32 s30, s2, {nw}")
        a("  s_add_u32 s30, s30, s3")
        a("  s_lshl_b32 s26, s30, 5")
        a("  s_add_u32 s26, s26, 0x40000000")
        a("  s_add_u32 s14, s14, s26")
        a("  s_addc_u32 s15, s15, 0")
        a("  s_waitcnt lgkmcnt(0)")
        for i in range(4): a(f"  v_mov_b32 v{4+i}, s{40+i}")
        a("  v_mov_b32 v1, 0")
        a("  s_mov_b64 exec, 1")
        a("  global_store_dwordx4 v1, v[4:7], s[14:15]")
        a("  s_getreg_b32 s44, hwreg(HW_REG_XCC_ID)")
        a("  s_getreg_b32 s45, hwreg(HW_REG_HW_ID)")
        a("  v_mov_b32 v2, s44")
        a("  v_mov_b32 v3, s45")
        a("  global_store_dwordx2 v1, v[2:3], s[14:15] offset:16")
        if stamps == 4:
            a("  s_mov_b64 exec, -1")
            a("  s_mul_i32 s30, s30, 480")
            a("  s_add_u32 s30, s30, 0x100000")
            a("  s_add_u32 s14, s14, s30")
            a("  s_addc_u32 s15, s15, 0")
            a("  v_lshlrev_b32 v1, 2, v0")
            a(f"  global_store_dword v1, v{vTr}, s[14:15]")
            a(f"  global_store_dword v1, v{vTr+1}, s[14:15] offset:256")
        if stamps == 3:
            a("  s_add_u32 s14, s14, 0x100000")
            a("  s_addc_u32 s15, s15, 0")
            for i in range(8): a(f"  v_mov_b32 v{12+i}, s{50+2*i}")
            a("  global_store_dwordx4 v1, v[12:15], s[14:15]")
            a("  global_store_dwordx4 v1, v[16:19], s[14:15] offset:16")
    a("L_done:")
    a("  s_endpgm")
    L.extend(outl)

    cks = [int(x) for x in str(ck).split(".")]
    gps = [int(x) for x in str(gp).split(".")] if str(gp) else []
    assert len(gps) == len(cks) - 1 and len(cks) <= 7 and nrep in (64, 128)
    pack = lambda v: sum(x << (8 * i) for i, x in enumerate(v))
    ct = pack(cks + [0]); gt = pack(gps)
    GD = [int(x) for x in str(guard).split(".")] if str(guard) else []
    assert not GD or (fast and ref2 < 0 and sub == 1 and len(GD) <= 3)
    GOFF = 0xa8000
    TA = 64 + T0 + nt + 1
    assert bc + 1 < TA <= 127
    hG, hG2, hH, hH2 = 12, 13, 14, 15
    hU, hS, hR, hA, hT = 16, 28, 40, 52, 76
    def slot_loads(d, h, h2):
        a(f"  global_load_dwordx4 {r4(d)}, v{h}, s[14:15] {HF}")
        a(f"  global_load_dwordx4 {r4(d+4)}, v{h}, s[14:15] offset:1024 {HF}")
        a(f"  global_load_dwordx2 {r2(d+8)}, v{h2}, s[14:15] {HF}")
    def put_cw():
        a("  s_or_b32 s30, s29, s28")
        a("  v_mov_b32 v2, s30")
        a("  ds_write_b32 v1, v2")
    a("; ws: slots 2 KiB * workgroup | +512 KiB (m, l) lines | +576 KiB echo lines | +640 KiB announcements | +672 KiB guard line")
    a("L_helper:")
    duty()
    a(f"  v_mov_b32 v1, {CW}")
    a("  s_lshl_b32 s29, s38, 16")
    a("  s_mov_b32 s28, 0")
    put_cw()
    a("  s_lshl_b32 s26, s2, 11")
    a(f"  v_lshl_add_u32 v{hG}, v0, 4, s26")
    a(f"  v_xor_b32 v{hH}, 0x800, v{hG}")
    a("  s_lshl_b32 s27, s2, 7")
    a("  s_add_u32 s26, s27, 0x80000")
    a(f"  v_lshrrev_b32 v{hG2}, 4, v0")
    a(f"  v_lshl_add_u32 v{hG2}, v{hG2}, 3, s26")
    a(f"  v_xor_b32 v{hH2}, 0x80, v{hG2}")
    if spoll: a("  s_xor_b32 s34, s26, 0x80")
    a("  s_add_u32 s26, s27, 0x90000")
    a("  v_mov_b32 v6, s26")
    a("  v_xor_b32 v7, 0x80, v6")
    a("  s_mov_b32 s26, 0xa0000")
    a("  v_lshl_add_u32 v3, v0, 7, s26")
    if ref2 >= 0:
        a(f"  s_cmp_eq_u32 s2, {ref2}")
        a(f"  s_cselect_b32 s20, {roff:#x}, 0")
        a("  v_add_u32 v3, s20, v3")
    a("  v_add_u32 v4, 0x2000, v3")
    a(f"  s_and_b32 s20, s27, {(nrep - 1) * 128:#x}")
    a("  s_add_u32 s20, s20, s26")
    a(f"  s_mov_b32 s16, {ct & 0xffffffff:#x}")
    a(f"  s_mov_b32 s17, {ct >> 32:#x}")
    a(f"  s_mov_b32 s18, {gt & 0xffffffff:#x}            ; gains")
    a(f"  s_mov_b32 s19, {gt >> 32:#x}")
    a("  s_mov_b32 s24, 0")
    a("  s_mov_b32 s25, 0")
    a("  s_mov_b32 s32, 0")
    a("  s_mov_b32 s39, 0")
    a("  s_lshr_b32 s31, s2, 2")
    a(f"  s_add_u32 s31, s31, {be}")
    a("  s_waitcnt lgkmcnt(0)")
    a("  s_add_u32 s4, s14, s20")
    a("  s_addc_u32 s5, s15, 0")
    if spoll:
        a("  s_add_u32 s6, s14, s34")
        a("  s_addc_u32 s7, s15, 0")
    a("  s_load_dword s21, s[4:5], 0 glc")
    if ref2 >= 0: a(f"  s_load_dword s8, s[4:5], {roff:#x} glc")
    if lsnap:
        a("  s_waitcnt lgkmcnt(0)")
    slot_loads(hU, hG, hG2)
    slot_loads(hS, hH, hH2)
    a(f"  s_cmp_eq_u32 s2, {ref}")
    a("  s_cselect_b32 s33, 1, 0")
    if ref2 >= 0:
        a(f"  s_cmp_eq_u32 s2, {ref2}")
        a("  s_cselect_b32 s33, 1, s33")
        a("  s_mov_b64 s[10:11], s[16:17]")
        a("  s_cmp_eq_u32 s33, 1")
    a("  s_cbranch_scc0 L_hnot")
    if ref2 < 0 and not GD: a(f"  s_mov_b32 s32, {cks[-1] + (1 if fast else 2) + fm - rfm}")
    for i in range(len(GD)): a(f"  s_load_dword s{40+i}, s[14:15], {GOFF + 128 * i:#x} glc")
    a(f"  global_load_dword v5, v3, s[14:15] {HF}")
    if nrep > 64: a(f"  global_load_dword v11, v4, s[14:15] {HF}")
    a("L_hnot:")
    if GD:
        a("  ; guard: a workgroup on another die whose progress the announcer waits for before it reports")
        a("  s_mov_b64 s[10:11], 0")
        for i, g_ in enumerate(GD):
            a(f"  s_cmp_eq_u32 s2, {g_}")
            a(f"  s_cselect_b32 s26, {GOFF + 128 * i:#x}, {'s26' if i else 0}")
        a("  v_mov_b32 v86, s26")
        a("  s_cmp_eq_u32 s26, 0")
        a("  s_cbranch_scc1 L_hng")
        a("  s_mov_b64 s[10:11], s[16:17]")
        a(f"  global_load_dword v87, v86, s[14:15] {HF}")
        a("L_hng:")
    a("L_hloop:")
    a("  s_barrier")
    a("  s_add_u32 s24, s24, 1")
    a("  s_waitcnt vmcnt(0) lgkmcnt(0)")
    a("  s_mov_b64 exec, 1")
    a("  s_cmp_eq_u32 s24, 1")
    a("  s_cbranch_scc0 L_he1")
    if not fast: a("  s_mov_b32 s35, s21")
    a(f"  global_load_dword v8, v6, s[14:15] {HF}")
    a(f"  global_load_dword v9, v7, s[14:15] {HF}")
    a("L_he1:")
    a("  s_cmp_eq_u32 s24, s31")
    a("  s_cbranch_scc0 L_he2")
    if not noecho: a("  v_add_u32 v8, 1, v8")
    if noecho == 2:
        a("  s_and_b32 s30, s2, 1")
        a("  v_add_u32 v8, s30, v8")
    a(f"  global_store_dword v6, v8, s[14:15] {HF}")
    a("L_he2:")
    a(f"  s_cmp_eq_u32 s24, {bc}")
    a("  s_cbranch_scc0 L_he3")
    a(f"  global_load_dword v10, v7, s[14:15] {HF}")
    a("L_he3:")
    a(f"  s_cmp_eq_u32 s24, {bc + 1}")
    a("  s_cbranch_scc0 L_he4")
    a("  v_cmp_ne_u32 vcc, v9, v10")
    a("  s_mov_b32 s39, vcc_lo")
    a("L_he4:")
    if GD:
        a("  s_and_b32 s30, s10, 0xff")
        a(f"  s_sub_u32 s30, s30, {bl}")
        a("  s_cmp_eq_u32 s30, s24")
        a("  s_cbranch_scc0 L_he5")
        a("  v_add_u32 v87, 1, v87")
        a(f"  global_store_dword v86, v87, s[14:15] {HF}")
        a("  s_lshr_b64 s[10:11], s[10:11], 8")
        a("L_he5:")
    a("  s_mov_b64 exec, -1")
    a(f"  s_cmp_eq_u32 s24, {TA}")
    a("  s_cbranch_scc1 L_hpub")
    a("L_hpubd:")
    a("  s_cmp_eq_u32 s33, 1")
    a("  s_cbranch_scc1 L_href")
    a("L_hread:")
    a("  s_cmp_lg_u32 s32, 0")
    a("  s_cbranch_scc1 L_hwait")
    def look():
        a("  ; look only from shortly before the next announcement is due")
        a("  s_lshl_b32 s30, s25, 3")
        a("  s_lshr_b64 s[22:23], s[16:17], s30")
        a("  s_and_b32 s22, s22, 0xff")
        a(f"  s_add_u32 s23, s24, {pw}")
        a("  s_cmp_lt_u32 s23, s22")
        a("  s_cbranch_scc1 L_hnext")
        a("  s_load_dword s35, s[4:5], 0 glc")
        if ref2 >= 0: a(f"  s_load_dword s9, s[4:5], {roff:#x} glc")
    if fast:
        look()
        a("  s_waitcnt lgkmcnt(0)")
    a("  s_sub_u32 s30, s35, s21")
    if ref2 >= 0:
        assert fast
        a("  s_sub_u32 s9, s9, s8")
        a("  s_min_u32 s30, s30, s9")
    if sub > 1:
        assert fast and ref2 < 0
        for i in range(1, sub):
            a(f"  s_mov_b32 s9, {i - 1}")
            a("  s_cmp_eq_u32 s30, s25")
            a("  s_cbranch_scc0 L_hsaw0" if sl and i == 1 else "  s_cbranch_scc0 L_hsaw")
            if sl and i == 1:
                a(f"  s_cmp_lt_u32 s25, {len(cks) - sl}")
                a("  s_cbranch_scc1 L_hsame")
            a("  s_load_dword s35, s[4:5], 0 glc")
            a("  s_waitcnt lgkmcnt(0)")
            a("  s_sub_u32 s30, s35, s21")
        a(f"  s_mov_b32 s9, {sub - 1}")
    a("  s_cmp_eq_u32 s30, s25")
    a("  s_cbranch_scc1 L_hsame")
    if sub > 1 and sl:
        a("  s_branch L_hsaw")
        a("L_hsaw0:")
        a(f"  s_cmp_lt_u32 s25, {len(cks) - sl}")
        a(f"  s_cselect_b32 s9, {so}, s9")
    a("L_hsaw:")
    a(f"  s_min_u32 s25, s30, {len(cks)}")
    a("  s_lshl_b32 s30, s25, 3")
    a("  s_sub_u32 s30, s30, 8")
    a("  s_lshr_b64 s[22:23], s[16:17], s30")
    a("  s_and_b32 s22, s22, 0xff")
    a("  s_sub_i32 s22, s22, s24")
    a(f"  s_add_i32 s22, s22, {(0 if fast else 1) + lo}")
    a("L_hlate:")
    if sub > 1:
        a(f"  s_mul_i32 s22, s22, {sub}")
        a("  s_sub_i32 s22, s22, s9")
        if so: a(f"  s_add_i32 s22, s22, {so}")
    a(f"  s_cmp_eq_u32 s25, {len(cks)}")
    a("  s_cbranch_scc1 L_hfin")
    a("  s_lshr_b64 s[26:27], s[18:19], s30")
    a("  s_and_b32 s26, s26, 0xff")
    a("  s_mul_i32 s26, s26, s22")
    if gi:
        a(f"  s_mul_i32 s22, s22, {gi}")
        a("  s_add_i32 s38, s38, s22")
    a("  s_add_i32 s30, s38, s26")
    a("  s_max_i32 s30, s30, 0")
    a(f"  s_min_i32 s30, s30, {min(umax, (lev - 1) * 256)}")
    a("  s_lshl_b32 s29, s30, 16")
    put_cw()
    a("L_hsame:")
    if not fast: look()
    a("L_hnext:")
    a("  s_cmp_eq_u32 s24, 64")
    a("  s_cbranch_scc0 L_hnb")
    a("  s_barrier")
    a("L_hnb:")
    a("  s_cmp_lt_u32 s24, 127")
    a("  s_cbranch_scc1 L_hloop")
    a("  s_branch L_hget")
    a("L_hfin:")
    a(f"  s_mul_i32 s22, s22, {fk}")
    a("  s_ashr_i32 s22, s22, 1")
    a("  s_sub_i32 s32, s24, s22")
    a(f"  s_add_i32 s32, s32, {fm}")
    a("  s_max_i32 s32, s32, 1")
    a("L_hwait:")
    a("  s_cmp_lt_i32 s24, s32")
    a("  s_cbranch_scc1 L_hnext")
    a("  s_mov_b32 s28, 1")
    put_cw()
    a("  s_branch L_hnext")
    a("L_href:")
    if GD:
        a("  s_cmp_lg_u32 s32, 0")
        a("  s_cbranch_scc1 L_hwait")
        a("  s_lshl_b32 s30, s25, 3")
        a("  s_lshr_b64 s[22:23], s[16:17], s30")
        a("  s_and_b32 s22, s22, 0xff")
        a("  s_sub_i32 s22, s22, s24")
        a("  s_cmp_gt_i32 s22, 0")
        a("  s_cbranch_scc1 L_hnext")
        a(f"  s_cmp_le_i32 s22, {-gto}")
        a("  s_cbranch_scc1 L_hsay")
        for i in range(len(GD)): a(f"  s_load_dword s{44+i}, s[14:15], {GOFF + 128 * i:#x} glc")
        a("  s_waitcnt lgkmcnt(0)")
        for i in range(len(GD)):
            a(f"  s_sub_u32 s{44+i}, s{44+i}, s{40+i}")
            a(f"  s_cmp_gt_u32 s{44+i}, s25")
            a("  s_cbranch_scc0 L_hnext")
        a("L_hsay:")
        a("  v_add_u32 v5, 1, v5")
        a(f"  global_store_dword v3, v5, s[14:15] {HF}")
        if nrep > 64:
            a("  v_add_u32 v11, 1, v11")
            a(f"  global_store_dword v4, v11, s[14:15] {HF}")
        a("  s_add_u32 s25, s25, 1")
        a(f"  s_cmp_eq_u32 s25, {len(cks)}")
        a("  s_cbranch_scc0 L_hlate")
        a(f"  s_mul_i32 s22, s22, {fk}")
        a("  s_ashr_i32 s22, s22, 1")
        a("  s_sub_i32 s32, s24, s22")
        a(f"  s_add_i32 s32, s32, {1 + fm - rfm}")
        a("  s_branch L_hwait")
    if not GD:
        tb, nxt = ("s[10:11]", "L_hread") if ref2 >= 0 else ("s[16:17]", "L_hwait")
        a(f"  s_and_b32 s30, {'s10' if ref2 >= 0 else 's16'}, 0xff")
        a("  s_cmp_eq_u32 s30, s24")
        a(f"  s_cbranch_scc0 {nxt}")
        a("  v_add_u32 v5, 1, v5")
        a(f"  global_store_dword v3, v5, s[14:15] {HF}")
        if nrep > 64:
            a("  v_add_u32 v11, 1, v11")
            a(f"  global_store_dword v4, v11, s[14:15] {HF}")
        a(f"  s_lshr_b64 {tb}, {tb}, 8")
        a(f"  s_branch {'L_hnext' if ref2 >= 0 else nxt}")
    a("L_hpub:")
    a("  v_lshlrev_b32 v2, 5, v0")
    a(f"  ds_read_b128 {r4(hA)}, v2 offset:{DX}")
    a(f"  ds_read_b128 {r4(hA+4)}, v2 offset:{DX + 16}")
    a(f"  ds_read_b128 {r4(hA+12)}, v2 offset:{DX + 2048}")
    a(f"  ds_read_b128 {r4(hA+16)}, v2 offset:{DX + 2048 + 16}")
    a("  v_lshrrev_b32 v2, 4, v0")
    a("  v_lshlrev_b32 v2, 5, v2")
    a(f"  ds_read_b64 {r2(hA+8)}, v2 offset:{DL}")
    a(f"  ds_read_b64 {r2(hA+20)}, v2 offset:{DL + 512}")
    if not notag:
        for i in range(10): a(f"  v_not_b32 v{hU+i}, v{hU+i}")
    a("  s_waitcnt lgkmcnt(0)")
    for i in list(range(8)) + [9]: a(f"  v_add_f32 v{hA+i}, v{hA+i}, v{hA+12+i}")
    for i in range(10): a(f"  v_bfi_b32 v{hU+i}, 1, v{hU+i}, v{hA+i}")
    if not nohand:
        a(f"  global_store_dwordx4 v{hG}, {r4(hU)}, s[14:15] {HF}")
        a(f"  global_store_dwordx4 v{hG}, {r4(hU+4)}, s[14:15] offset:1024 {HF}")
        a("  s_mov_b32 exec_lo, 0x00010001")
        a("  s_mov_b32 exec_hi, 0x00010001")
        a(f"  global_store_dwordx2 v{hG2}, {r2(hU+8)}, s[14:15] {HF}")
        a("  s_mov_b64 exec, -1")
    a("  s_branch L_hpubd")
    a("L_hget:")
    if spoll: a(f"  v_readfirstlane_b32 s21, v{hS+8}")
    a("  s_xor_b32 s26, s2, 1")
    a("  v_mov_b32 v9, s26")
    a("  s_mov_b32 s25, 0")
    if nohand: a("  s_branch L_hhave")
    a("  s_cmp_lg_u32 s39, 0")
    a("  s_cbranch_scc1 L_hpoll")
    a("  v_mov_b32 v8, s2")
    a("  v_mov_b32 v10, 1")
    a("  s_waitcnt vmcnt(0)")
    a("  s_mov_b64 exec, 1")
    a(f"  global_store_byte v8, v10, s[12:13] {HF}")
    a("  s_mov_b64 exec, -1")
    a("L_hpoll:")
    a("  s_add_u32 s25, s25, 1")
    a("  s_bitcmp1_b32 s25, 23")
    a("  s_cbranch_scc1 L_hhave")
    a("  s_cmp_lg_u32 s39, 0")
    a("  s_cbranch_scc1 L_htag")
    a(f"  global_load_ubyte v{hT}, v9, s[12:13] {HF}")
    a("  s_waitcnt vmcnt(0)")
    a(f"  v_cmp_ne_u32 vcc, 0, v{hT}")
    a("  s_cbranch_vccz L_htag")
    slot_loads(hR, hH, hH2)
    a("  s_waitcnt vmcnt(0)")
    a("  s_branch L_hhave")
    a("L_htag:")
    if spoll:
        a("  s_load_dword s35, s[6:7], 0 glc")
        a("  s_waitcnt lgkmcnt(0)")
        a("  s_xor_b32 s35, s35, s21")
        a("  s_bitcmp1_b32 s35, 0")
        a("  s_cbranch_scc0 L_hpoll")
    slot_loads(hR, hH, hH2)
    a("  s_waitcnt vmcnt(0)")
    for i in range(10): a(f"  v_xor_b32 v{hT+i}, v{hR+i}, v{hS+i}")
    for i in range(5): a(f"  v_and_b32 v{hT+i}, v{hT+i}, v{hT+5+i}")
    a(f"  v_and_b32 v{hT}, v{hT}, v{hT+1}")
    a(f"  v_and_b32 v{hT+2}, v{hT+2}, v{hT+3}")
    a(f"  v_and_b32 v{hT}, v{hT}, v{hT+4}")
    a(f"  v_and_b32 v{hT}, v{hT}, v{hT+2}")
    a(f"  v_and_b32 v{hT}, 1, v{hT}")
    a(f"  v_cmp_eq_u32 vcc, 0, v{hT}")
    a("  s_cbranch_vccnz L_hpoll")
    a("L_hhave:")
    for i in range(10): a(f"  v_and_b32 v{hR+i}, -2, v{hR+i}")
    mo, lo_, mr, lr = hA + 8, hA + 9, hR + 8, hR + 9
    a(f"  v_min_f32 v2, v{mo}, v{mr}")
    a(f"  v_sub_f32 v{mo}, v2, v{mo}")
    a(f"  v_sub_f32 v{mr}, v2, v{mr}")
    a(f"  v_exp_f32 v{mo}, v{mo}")
    a(f"  v_exp_f32 v{mr}, v{mr}")
    a("  v_lshlrev_b32 v3, 5, v0")
    a(f"  v_mul_f32 v2, v{mo}, v{lo_}")
    a(f"  v_fmac_f32 v2, v{mr}, v{lr}")
    a("  v_rcp_f32 v2, v2")
    a("  v_lshlrev_b32 v4, 2, v0")
    a(f"  v_mul_f32 v{mo}, v{mo}, v2")
    a(f"  v_mul_f32 v{mr}, v{mr}, v2")
    for i in range(8): a(f"  v_mul_f32 v{hR+i}, v{mr}, v{hR+i}")
    a(f"  ds_write_b32 v4, v{mo} offset:{FA}")
    a(f"  ds_write_b128 v3, {r4(hR)} offset:{ZA}")
    a(f"  ds_write_b128 v3, {r4(hR+4)} offset:{ZA + 16}")
    a("  s_waitcnt lgkmcnt(0)")
    a("  s_barrier")
    a("  s_endpgm")
    nv4 = (nv + 3) // 4 * 4
    a(f""".section .rodata,"a"
.p2align 6
.amdhsa_kernel {KNAME}
  .amdhsa_next_free_vgpr {nv4}
  .amdhsa_next_free_sgpr {72 if stamps else 48}
  .amdhsa_accum_offset {nv4}
  .amdhsa_group_segment_fixed_size 0
  .amdhsa_kernarg_size 48
  .amdhsa_user_sgpr_count 2
  .amdhsa_user_sgpr_kernarg_segment_ptr 1
  .amdhsa_system_sgpr_workgroup_id_x 1
  .amdhsa_float_denorm_mode_32 3
.end_amdhsa_kernel""")
    return HEADER + "\n".join(L) + "\n"

def parse(spec):
    kw = {}
    for kv in spec.split(","):
        k_, v_ = kv.split("=")
        if k_ == 'flags': v_ = '' if v_ == 'none' else v_.replace("+", " ")
        elif k_ not in ('order', 'cm', 'hm', 'ck', 'gp', 'wx', 'guard') and v_.lstrip("-").isdigit(): v_ = int(v_)
        kw[k_] = v_
    return kw
if __name__ == "__main__":
    for spec in sys.argv[1:]:
        name = "k14_" + spec.replace(",", "_").replace("=", "").replace("+", "")[:80] + ".s"
        open(name, "w").write(gen(**parse(spec))); print(name)
```

```python
import sys, math

KNAME = "standalone__softmax_full_bidir__sampling_kernel"
HEADER = """; Kernarg layout for this problem (48 bytes, ptrs only, base s[0:1]):
;
"""
C_SCALE = 0x3DB8AA3B
DP = "row_mask:0xf bank_mask:0xf"
HF = "sc0 sc1"
W1 = '16.12x16.9x12.9x11x12.9x11x12x13x14x16x18x19x20.12x13.9x11x15.9x11x18x19.18.11x12x13x19x20.9x12x13x14x16x17x20.10x12x13x14x16x18x20'
W2 = '16.12x16.9x12.9x11x12.9x11x12x13x14x16x18x19x20.12x13.9x11x15.9x11x12x15x18x19.10x11x14x16x18x19.18.10x12x13x14x16x18x20.9x11x13x14x15x16x17x20'
WXB = '15.11x12x15.9x10x13x17x20.11x17x20.9x15x19.9x12x15x16x18x19x20.11x12x19.9x12x17x18'
def r4(b): return f"v[{b}:{b+3}]"
def r2(b): return f"v[{b}:{b+1}]"
def mask_of(t): return sum(1 << int(b) for b in t.split("x") if b != "0")

def gen(depth=9, lev=3, deep=14, d0=14, u0=230, ue=35, uq=0, ur=0, umax=9999, umin=0, order=W2, cm='7x8', hm='8', p=3,
        ck='30.55.80.102.118', gp='80.80.80.80', gi=0, lo=1, fm=4, fk=6, ref=5, nrep=128, pw=3,
        be=8, bc=90, nt=2, tie=2, spoll=0, noecho=0, notag=0, nohand=0, pair=0, nocomp=0, fast=1, jr=12, qk=0, lsnap=0, ref2=-1, roff=0x4000, sub=1, so=0, sl=0, rfm=2, wmap=0, wx=WXB, guard='7', bl=1, gto=3, stamps=0, flags='nt'):
    L = []; a = L.append
    NWG, nw = 256, 2
    km = [mask_of(t) for t in str(order).split(".")]
    assert len(km) == 12
    basis = []
    for m_ in km:
        assert m_ & 0x1ff == 0 and m_ < (1 << 21)
        for b in basis: m_ = min(m_, m_ ^ b)
        assert m_, "key masks must be independent"
        basis.append(m_); basis.sort(reverse=True)
    CM, HM = mask_of(str(cm)), mask_of(str(hm))
    assert {CM, HM} < {128, 256, 384} and CM != HM and p == 3
    LM, TM = km[:2], km[2:]
    KT = TM[:4]; KT[p] = HM
    HI = TM[4:]
    UNIT = 512
    NK = 1024; N = 2048; RU = 16
    dmax = max(deep, d0, depth + lev - 1)
    assert dmax == 14
    T0 = 64 - 2 * nt
    PAD = 2048
    MX = PAD + 65536 + 1536
    CW = MX + 512
    lds = CW + 16
    DX, DL, EX, ZA, FA = PAD, PAD + 4096, PAD + 6144, PAD + 10240, PAD + 12288
    vK, vV, vM0, vM1 = 1, 2, 3, 4
    vm, vmc, vl, vs, vt0, vt1, vp = 5, 6, 7, 8, 9, 10, 11
    vX = 12
    vCur, vAd, vRd2, vRdP = 16, 17, 19, 20
    vCWa, vCWv = 22, 23
    vQ = 24
    vA = 32
    vW, vRd, vsr, vpp = 40, 41, 42, 43
    vD, vO, vF = 45, 46, 47
    vML = 48
    vTr = 50
    vS = 52
    vB = vS
    vR = 84
    nv = vR + RU * 4
    cur = [depth]
    uid = [0]
    def slot(n): return vR + (n % RU) * 4
    def mark(i):
        if stamps == 3: a(f"  s_memrealtime s[{50+2*i}:{51+2*i}]")
    def comb(j, ms):
        c = 0
        for i, m_ in enumerate(ms):
            if j >> i & 1: c ^= m_
        return c
    def xor_bit(dst, src, bit, m_):
        a(f"  v_bfe_i32 v6, v{src}, {bit}, 1")
        a(f"  v_and_b32 v6, {m_:#x}, v6")
        a(f"  v_xor_b32 v{dst}, v{dst}, v6")
    def duty():
        a("  ; loads in flight above the minimum, in 1/256: the dies differ slightly in latency")
        a("  s_getreg_b32 s26, hwreg(HW_REG_XCC_ID)")
        a("  s_bitcmp0_b32 s26, 0")
        a(f"  s_cselect_b32 s38, {ue}, 0")
        a(f"  s_add_u32 s38, s38, {u0}")
        if uq:
            a("  s_bitcmp1_b32 s26, 2")
            a(f"  s_cselect_b32 s26, {uq}, 0")
            a("  s_add_u32 s38, s38, s26")
        if ur:
            a(f"  s_cmp_eq_u32 s2, {ref}")
            a(f"  s_cselect_b32 s26, {ur}, 0")
            a("  s_sub_u32 s38, s38, s26")

    a(f"; @launch grid=({NWG},1,1) block=(192,1,1) lds={lds}")
    a('.amdgcn_target "amdgcn-amd-amdhsa--gfx950"')
    a(".text")
    a(f".globl {KNAME}")
    a(".p2align 8")
    a(f".type {KNAME},@function")
    a(f"{KNAME}:")
    a(f"  s_cmp_ge_u32 s2, {NWG}")
    a("  s_cbranch_scc1 L_done")
    a("  s_load_dwordx4 s[4:7], s[0:1], 0       ; q, k")
    a("  s_load_dwordx4 s[8:11], s[0:1], 16     ; v, out")
    a("  s_load_dwordx4 s[12:15], s[0:1], 32")
    if stamps: a("  s_memrealtime s[40:41]")
    a("  v_lshrrev_b32 v7, 6, v0")
    a("  v_and_b32 v0, 63, v0                   ; lane")
    a("  v_readfirstlane_b32 s3, v7             ; wave")
    a("  s_cmp_eq_u32 s3, 2")
    a("  s_cbranch_scc1 L_helper")
    a("  v_and_b32 v8, 3, v0")
    a("  v_lshlrev_b32 v8, 4, v8")
    xor_bit(8, 0, 4, 64)
    xor_bit(8, 0, 5, CM)
    xor_bit(8, 7, 0, HM)
    a("  v_bfe_u32 v6, v0, 2, 2")
    a("  v_lshl_or_b32 v9, v6, 9, v8")
    a(f"  v_xor_b32 v10, {HM:#x}, v9")
    a(f"  v_mov_b32 v{vK}, v8")
    xor_bit(vK, 0, 2, LM[0])
    xor_bit(vK, 0, 3, LM[1])
    xor_bit(vK, 7, 0, TM[p])
    WX = [mask_of(t) for t in str(wx).split(".")] if str(wx) else []
    if any(WX):
        a("  ; workgroups start at different points of the same walk")
        a("  s_mov_b32 s29, 0")
        for i, m_ in enumerate(WX):
            assert m_ & 0x1ff == 0
            if m_:
                a(f"  s_bitcmp1_b32 s2, {i}")
                a(f"  s_cselect_b32 s26, {m_:#x}, 0")
                a("  s_xor_b32 s29, s29, s26")
        a(f"  v_xor_b32 v{vK}, s29, v{vK}")
    a(f"  v_mov_b32 v{vCur}, v{vK}")
    if wmap:
        a("  ; heads are dealt so that workgroups that share a die read neighbouring pages")
        a("  s_bfe_u32 s26, s2, 0x20001")
        a("  s_lshr_b32 s30, s2, 3")
        if wmap == 1:
            a("  s_lshl_b32 s26, s26, 5")
            a("  s_or_b32 s30, s30, s26")
        else:
            a(f"  s_lshl_b32 s26, s26, {wmap}")
            a(f"  s_and_b32 s27, s30, {(1 << wmap) - 1}")
            a("  s_or_b32 s26, s26, s27")
            a(f"  s_lshr_b32 s30, s30, {wmap}")
            a(f"  s_lshl_b32 s30, s30, {wmap + 2}")
            a("  s_or_b32 s30, s30, s26")
        a("  s_and_b32 s26, s2, 1")
        a("  s_lshl_b32 s28, s30, 1")
        a("  s_or_b32 s28, s28, s26")
        a("  s_lshl_b32 s28, s28, 21")
    else:
        a("  s_lshl_b32 s28, s2, 21")
        a("  s_lshr_b32 s30, s2, 1")
    a("  s_lshl_b32 s30, s30, 11")
    a("  s_mov_b32 s25, 0")
    a("  s_mov_b32 s24, 1")
    a("  s_mov_b32 s18, 0x200000")
    a("  s_mov_b32 s19, 0x20000")
    a("  s_mov_b32 s34, 2048")
    a("  s_mov_b32 s35, 0x20000")
    a("  s_waitcnt lgkmcnt(0)")
    mark(0)
    a("  s_add_u32 s16, s6, s28")
    a("  s_addc_u32 s17, s7, 0")
    a("  s_and_b32 s17, s17, 0xffff")
    def q_loads():
        a("  s_add_u32 s32, s4, s30")
        a("  s_addc_u32 s33, s5, 0")
        a("  s_and_b32 s33, s33, 0xffff")
        a(f"  buffer_load_dwordx4 {r4(vQ)}, v9, s[32:35], 0 offen")
        a(f"  buffer_load_dwordx4 {r4(vQ+4)}, v10, s[32:35], 0 offen")
    if not qk: q_loads()

    def addr(n):
        j = n % RU
        c = comb(j, KT if n < NK else TM[:4])
        r = vCur
        if j:
            r = vAd + (j & 1)
            a(f"  v_xor_b32 v{r}, {c:#x}, v{vCur}")
        return r
    def after_issue(n):
        j = n % RU
        if j == 1: a("  s_add_u32 s25, s25, s24")
        if 2 <= j < 8:
            a(f"  s_bitcmp1_b32 s25, {j-2}")
            if j == 2:
                a(f"  s_cselect_b32 s31, {HI[0]:#x}, 0")
            else:
                a(f"  s_cselect_b32 s26, {HI[j-2]:#x}, 0")
                a("  s_xor_b32 s31, s31, s26")
        if j == jr and n >= RU: a(f"  ds_read_b32 v{vCWv}, v{vCWa}")
        if j == jr + 3 and n >= RU:
            a("  s_waitcnt lgkmcnt(0)")
            a(f"  v_readfirstlane_b32 s38, v{vCWv}")
            if stamps == 4:
                a("  s_add_u32 s52, s52, 1")
                a("  s_mov_b32 m0, s52")
                a(f"  v_writelane_b32 v{vTr if n < NK else vTr + 1}, s50, m0")
    def kinfo(x):
        j = x % RU
        return j >> 3, j & 7
    def reduce_k(x, n0, nops):
        _, gi_ = kinfo(x)
        S = vS + gi_ * 4
        if nops: a(f"  s_nop {nops - 1}")
        a(f"  v_mov_b32_dpp v{vt0}, v{S} quad_perm:[0,0,0,0] {DP}")
        a(f"  v_mov_b32_dpp v{vt1}, v{S+2} quad_perm:[2,2,2,2] {DP}")
        a("  s_nop 0")
        a(f"  v_add_f32_dpp v{vt0}, v{S+1}, v{vt0} quad_perm:[1,1,1,1] {DP}")
        a(f"  v_add_f32_dpp v{vt1}, v{S+3}, v{vt1} quad_perm:[3,3,3,3] {DP}")
        a(f"  v_add_f32 v{vs}, v{vt0}, v{vt1}")
        a(f"  v_max_f32 v{vm}, v{vm}, v{vs}")
        off = (x // RU - n0 // RU) * 1024 + (gi_ >> 2) * 256 + (gi_ & 3) * 4 + PAD
        a(f"  ds_write_b32 v{vW}, v{vs} offset:{off}")
    def lds_read(b, n0):
        rel = b - (n0 - NK) // 4
        assert -1 <= rel < 4
        r = vRdP if rel < 0 else (vRd2 if rel & 2 else vRd)
        a(f"  ds_read_b32 v{vsr}, v{r} offset:{(rel & 3) * 256 + PAD - 512}")
    def prep(b):
        a(f"  v_add_f32 v{vl}, v{vl}, v{vp}")
        a("  s_waitcnt lgkmcnt(0)")
        a(f"  v_fma_f32 v{vp}, v{vsr}, s36, v{vmc}")
        a(f"  v_exp_f32 v{vp}, v{vp}")
        a("  s_nop 0")
        a(f"  v_cvt_pk_bf16_f32 v{vpp + (b & 1)}, v{vp}, v{vp}")
    def mk_x(y):
        X = vX + (y & 1) * 2; i = y & 3; pp = vpp + ((y >> 2) & 1)
        a(f"  v_and_b32_dpp v{X}, v{pp}, v{vM0} quad_perm:[{i},{i},{i},{i}] {DP}")
        a(f"  v_and_b32_dpp v{X+1}, v{pp}, v{vM1} quad_perm:[{i},{i},{i},{i}] {DP}")
    def transition(n0):
        a("  ; scores done: row maximum over the workgroup's keys")
        a(f"  v_mov_b32 v{vt0}, v{vm}")
        a(f"  s_lshl_b32 s26, s3, 8")
        a(f"  s_add_u32 s26, s26, {MX}")
        a(f"  v_permlane32_swap_b32 v{vt0}, v{vm}")
        a(f"  v_max_f32 v{vm}, v{vm}, v{vt0}")
        a(f"  v_mov_b32 v{vt0}, v{vm}")
        a(f"  v_lshl_add_u32 v{vt1}, v0, 2, s26")
        a(f"  v_xor_b32 v{vs}, 0x100, v{vt1}")
        a(f"  v_permlane16_swap_b32 v{vt0}, v{vm}")
        a(f"  v_max_f32 v{vm}, v{vm}, v{vt0}")
        a(f"  ds_write_b32 v{vt1}, v{vm}")
        a("  s_waitcnt lgkmcnt(0)")
        a("  s_barrier")
        a(f"  ds_read_b32 v{vt0}, v{vs}")
        lds_read(0, n0)
        a("  s_waitcnt lgkmcnt(1)")
        a(f"  v_max_f32 v{vm}, v{vm}, v{vt0}")
        a(f"  v_mul_f32 v{vmc}, s36, v{vm}")
        a(f"  v_sub_f32 v{vmc}, 0, v{vmc}")
        a(f"  v_and_b32 v{vmc}, -2, v{vmc}")
        prep(0)
        lds_read(1, n0)
        a("  s_nop 0")
        mk_x(0)
    outl = []
    def glue():
        uid[0] += 1; u = uid[0]
        a("  s_cmp_lg_u32 s39, 0")
        a(f"  s_cbranch_scc1 L_glue{u}")
        a(f"L_back{u}:")
        o = outl.append
        o(f"L_glue{u}:")
        o("  s_cmp_eq_u32 s39, 2")
        o("  s_mov_b32 s39, 0")
        o(f"  s_cbranch_scc1 L_dump{u}")
        o(f"  v_cndmask_b32 v{vl}, v{vl}, 0, s[44:45]")
        o("  s_nop 3")
        for i in range(8): o(f"  v_cndmask_b32 v{vB+i}, 0, v{vA+i}, s[44:45]")
        for i in range(8): o(f"  v_cndmask_b32 v{vA+i}, v{vA+i}, 0, s[44:45]")
        o("  s_nop 0")
        o(f"  s_branch L_back{u}")
        o(f"L_dump{u}:")
        o(f"  v_add_f32_dpp v{vt0}, v{vl}, v{vl} quad_perm:[1,0,3,2] {DP}")
        o("  s_nop 1")
        o(f"  v_add_f32_dpp v{vt0}, v{vt0}, v{vt0} quad_perm:[2,3,0,1] {DP}")
        o(f"  v_mov_b32 v{vt1}, v{vt0}")
        o(f"  ds_write_b128 v{vD}, {r4(vA)} offset:{DX}")
        o(f"  ds_write_b128 v{vD}, {r4(vA+4)} offset:{DX + 16}")
        o(f"  v_permlane32_swap_b32 v{vt0}, v{vt1}")
        o(f"  v_add_f32 v{vt0}, v{vt0}, v{vt1}")
        o(f"  v_mov_b32 v{vt1}, v{vt0}")
        o("  s_nop 1")
        o(f"  v_permlane16_swap_b32 v{vt0}, v{vt1}")
        o(f"  v_add_f32 v{vML+1}, v{vt0}, v{vt1}")
        o(f"  v_mov_b32 v{vML}, v{vmc}")
        o(f"  v_lshrrev_b32 v{vt0}, 2, v{vD}")
        o(f"  ds_write_b64 v{vt0}, {r2(vML)} offset:{DL}")
        o("  s_waitcnt lgkmcnt(0)")
        for i in range(8): o(f"  v_mov_b32 v{vA+i}, v{vB+i}")
        o("  s_nop 0")
        o(f"  s_branch L_back{u}")
    def compute(x, n0, issued, inloop, tight=0):
        if x < 0 or x >= N: return
        if nocomp and inloop: return
        if x < NK:
            half, gi_ = kinfo(x)
            S = vS + gi_ * 4
            if half == 0:
                a(f"  v_mfma_f32_16x16x32_bf16 {r4(S)}, {r4(slot(x))}, {r4(vQ)}, 0")
            else:
                a(f"  v_mfma_f32_16x16x32_bf16 {r4(S)}, {r4(slot(x))}, {r4(vQ+4)}, {r4(S)}")
            done = lambda z: z >= 0 and kinfo(z)[0] == 1
            if done(x - 1): reduce_k(x - 1, n0, 0 if done(x - 2) else max(5, tight))
            if x == NK - 1:
                reduce_k(x, n0, 1)
                transition(n0)
        else:
            y = x - NK
            X = vX + (y & 1) * 2
            if inloop and y % RU == 0: glue()
            if not issued: a("  s_nop 0")
            for half in range(2):
                acc = vA + half * 4
                a(f"  v_mfma_f32_16x16x16_bf16 {r4(acc)}, {r2(X)}, {r2(slot(x) + 2*half)}, {r4(acc)}")
            b = y >> 2
            if y + 1 < NK: mk_x(y + 1)
            if (y & 3) == 1 and b + 1 < 256:
                prep(b + 1)
                if b + 2 < 256: lds_read(b + 2, n0)
    def step(n, n0, inloop=False):
        x = n - dmax
        if n < N:
            r = addr(n)
            if n - cur[0] >= 0:
                a(f"  s_waitcnt vmcnt({cur[0] - 1})")
            srd = "s[16:19]" if n < NK else "s[20:23]"
            a(f"  buffer_load_dwordx4 {r4(slot(n))}, v{r}, {srd}, 0 offen {flags}")
            after_issue(n)
        elif x < N:
            a(f"  s_waitcnt vmcnt({N - 1 - x})")
        if x == 0: mark(1)
        if x == NK: mark(2)
        if n == RU - 1 and stamps == 3: a("  s_waitcnt lgkmcnt(0)")
        compute(x, n0, n < N, inloop)

    cur[0] = d0
    for n in range(RU):
        if n == d0:
            a("  ; V descriptor and lane offsets, constants, accumulators, LDS addresses")
            a("  s_add_u32 s20, s8, s28")
            a("  s_addc_u32 s21, s9, 0")
            a("  s_and_b32 s21, s21, 0xffff")
            a("  s_mov_b32 s22, 0x200000")
            a("  s_mov_b32 s23, 0x20000")
            a(f"  v_and_b32 v{vV}, 7, v0")
            a(f"  v_lshlrev_b32 v{vV}, 4, v{vV}")
            xor_bit(vV, 0, 3, CM)
            xor_bit(vV, 0, 4, LM[0])
            xor_bit(vV, 0, 5, LM[1])
            xor_bit(vV, 7, 0, HM ^ TM[p])
            if any(WX): a(f"  v_xor_b32 v{vV}, s29, v{vV}")
            a(f"  v_and_b32 v{vO}, 15, v0")
            a(f"  v_lshlrev_b32 v{vO}, 3, v{vO}")
            xor_bit(vO, 0, 4, CM)
            xor_bit(vO, 0, 5, 512)
            a("  s_and_b32 s27, s2, 1")
            a(f"  s_mul_i32 s26, s27, {HM}")
            a(f"  v_xor_b32 v{vO}, s26, v{vO}")
            a("  s_lshl_b32 s26, s3, 10")
            a(f"  v_lshl_add_u32 v{vF}, v0, 4, s26")
            a("  s_add_u32 s26, s26, s30")
            a(f"  v_add_u32 v{vO}, s26, v{vO}")
            a("  s_lshl_b32 s26, s3, 11")
            a(f"  v_lshl_add_u32 v{vD}, v0, 5, s26")
            a("  s_cmp_eq_u32 s27, s3")
            a("  s_cselect_b64 s[44:45], -1, 0")
            a(f"  s_mul_i32 s46, s3, {HI[0]:#x}")
            a(f"  s_xor_b32 s46, s46, {comb(T0, HI):#x}")
            a("  s_mov_b32 s39, 0")
            a("  s_mov_b32 s47, 1024")
            a(f"  s_mov_b32 s36, {C_SCALE:#x}")
            a("  v_and_b32 v5, 1, v0")
            a("  v_lshlrev_b32 v5, 4, v5")
            a("  v_mov_b32 v6, 0xffff")
            a("  v_lshlrev_b32 v5, v5, v6")
            a("  v_and_b32 v6, 2, v0")
            a("  v_cmp_eq_u32 vcc, 0, v6")
            a(f"  v_lshlrev_b32 v{vRd}, 2, v0")
            a(f"  v_and_b32 v{vW}, -16, v{vRd}")
            a(f"  v_cndmask_b32 v{vM0}, 0, v5, vcc")
            a(f"  v_cndmask_b32 v{vM1}, v5, 0, vcc")
            a("  v_lshlrev_b32 v6, 9, v7")
            a(f"  v_add_u32 v{vW}, v6, v{vW}")
            a(f"  v_add_u32 v{vRd}, 512, v{vRd}")
            a(f"  v_sub_u32 v{vRd2}, v{vRd}, v6")
            a(f"  v_add_u32 v{vRd}, v6, v{vRd}")
            a(f"  v_mov_b32 v{vm}, 0xff800000")
            a(f"  v_mov_b32 v{vl}, 0")
            a(f"  v_mov_b32 v{vp}, 0")
            for i in range(8):
                a(f"  v_mov_b32 v{vA+i}, 0")
            duty()
            a("  s_lshl_b32 s38, s38, 16")
            a("  s_lshl_b32 s37, s2, 16")
            a(f"  v_mov_b32 v{vCWa}, {CW}")
            if stamps == 4: a("  s_mov_b32 s52, 0")
        step(n, 0)
        if qk and n == 0: q_loads()
    def step2(n, n0, g):
        rs = []
        for i in range(g):
            j = (n + i) % RU
            c = comb(j, KT if n < NK else TM[:4])
            r = vCur
            if j:
                r = (17, 18, 21, 50)[i]
                a(f"  v_xor_b32 v{r}, {c:#x}, v{vCur}")
            rs.append(r)
        srd = "s[16:19]" if n < NK else "s[20:23]"
        for i in range(g):
            if pair & 1: a(f"  s_waitcnt vmcnt({cur[0] - 1})")
            elif i == 0: a(f"  s_waitcnt vmcnt({cur[0] - g})")
            a(f"  buffer_load_dwordx4 {r4(slot(n + i))}, v{rs[i]}, {srd}, 0 offen {flags}")
        for i in range(g): after_issue(n + i)
        for i in range(g):
            if i and n >= NK: a("  s_nop 0")
            compute(n + i - dmax, n0, i == 0, True, 8 if i else 0)
    def body(n0, d):
        cur[0] = d
        if pair:
            for n in range(n0, n0 + RU, 2): step2(n, n0, 2)
        else:
            for n in range(n0, n0 + RU): step(n, n0, True)
        a("  s_sub_u32 s29, s29, 1")
        a("  s_cmp_lg_u32 s29, 0")
    def sync(base):
        a(f"  v_xor_b32 v{vCur}, s31, v{base}")
        a("  s_barrier")
        if stamps == 4: a("  s_memrealtime s[50:51]")
    def bodies(name, n0):
        if name == "v":
            a("  s_bitcmp1_b32 s38, 0")
            a(f"  s_cbranch_scc1 L_{name}_c")
        a("  s_and_b32 s37, s37, 0xffffff")
        a("  s_add_u32 s37, s37, s38")
        a("  s_lshr_b32 s26, s37, 24")
        order_ = sorted(range(lev), key=lambda x: abs(x - (u0 + ue / 2) / 256))
        for x in order_[1:]:
            a(f"  s_cmp_eq_u32 s26, {x}")
            a(f"  s_cbranch_scc1 L_{name}_{x}")
        tails = [(f"{x}", depth + x) for x in order_]
        if name == "v": tails.append(("c", deep))
        for i, (tag, d) in enumerate(tails):
            a(f"L_{name}_{tag}:")
            body(n0, d)
            a(f"  s_cbranch_scc1 L_{name}")
            if i < len(tails) - 1: a(f"  s_branch L_{name}_e")
        a(f"L_{name}_e:")
    a("; ---- K phase")
    a(f"  s_mov_b32 s29, {NK // RU - 1}")
    a("L_k:")
    a(f"  v_add_u32 v{vW}, 1024, v{vW}")
    sync(vK)
    bodies("k", RU)
    a(f"  v_add_u32 v{vW}, 1024, v{vW}")
    sync(vV)
    cur[0] = depth + round((u0 + ue / 2) / 256 + 0.25)
    for n in range(NK, NK + RU): step(n, NK)
    a("; ---- V phase")
    a(f"  s_mov_b32 s29, {T0 - 1}")
    a("  s_mov_b32 s33, 0")
    a("L_v:")
    a(f"  v_mov_b32 v{vRdP}, v{vRd2}")
    a(f"  v_add_u32 v{vRd}, s47, v{vRd}")
    a(f"  v_add_u32 v{vRd2}, s47, v{vRd2}")
    a("L_v_go:")
    sync(vV)
    bodies("v", NK + RU)
    a(f"  v_mov_b32 v{vRdP}, v{vRd2}")
    a("  s_add_u32 s33, s33, 1")
    a("  s_cmp_eq_u32 s33, 3")
    a("  s_cbranch_scc1 L_drain")
    a("  s_mov_b32 s39, s33")
    a(f"  s_mov_b32 s29, {nt}")
    a("  s_mov_b32 s24, 2")
    a("  s_mov_b32 s47, 2048")
    a(f"  s_add_u32 s25, s3, {T0}")
    a("  s_mov_b32 s31, s46")
    a("  s_cmp_eq_u32 s33, 2")
    a("  s_cselect_b32 s26, -1, s44")
    a(f"  s_and_b32 s26, s26, {HM ^ (TM[p] if tie == 1 else 0):#x}")
    a(f"  v_xor_b32 v{vV}, s26, v{vV}")
    if tie == 1:
        a("  s_xor_b32 s26, s27, s33")
        a("  s_and_b32 s26, s26, 1")
        a("  s_lshl_b32 s26, s26, 9")
    else:
        a("  s_lshl_b32 s26, s3, 9")
    a("  s_lshl_b32 s32, s25, 10")
    a("  s_add_u32 s32, s32, 512")
    a(f"  v_lshl_add_u32 v{vRd}, v0, 2, s32")
    a(f"  v_subrev_u32 v{vRd2}, s26, v{vRd}")
    a(f"  v_add_u32 v{vRd}, s26, v{vRd}")
    a("  s_branch L_v_go")
    a("L_drain:")
    for n in range(N, N + dmax): step(n, N)
    if stamps: a("  s_memrealtime s[42:43]")
    for i in (3, 6): mark(i)
    a(f"  v_lshrrev_b32 v{vt0}, 5, v{vF}")
    a(f"  v_lshlrev_b32 v{vt0}, 2, v{vt0}")
    a("  s_nop 5")
    a(f"  ds_write_b128 v{vD}, {r4(vA)} offset:{EX}")
    a(f"  ds_write_b128 v{vD}, {r4(vA+4)} offset:{EX + 16}")
    a("  s_waitcnt lgkmcnt(0)")
    a("  s_barrier")
    mark(4)
    if stamps == 3: a("  s_waitcnt lgkmcnt(0)")
    a(f"  ds_read_b128 {r4(vB)}, v{vF} offset:{EX}")
    a(f"  ds_read_b128 {r4(vB+4)}, v{vF} offset:{EX + 2048}")
    a(f"  ds_read_b32 v{vt1}, v{vt0} offset:{FA}")
    a(f"  ds_read_b128 {r4(vB+8)}, v{vF} offset:{ZA}")
    a("  s_waitcnt lgkmcnt(2)")
    for i in range(4): a(f"  v_add_f32 v{vB+i}, v{vB+i}, v{vB+4+i}")
    a("  s_waitcnt lgkmcnt(0)")
    for i in range(4): a(f"  v_fma_f32 v{vB+i}, v{vB+i}, v{vt1}, v{vB+8+i}")
    a(f"  v_cvt_pk_bf16_f32 v{vB}, v{vB}, v{vB+1}")
    a(f"  v_cvt_pk_bf16_f32 v{vB+1}, v{vB+2}, v{vB+3}")
    a(f"  global_store_dwordx2 v{vO}, {r2(vB)}, s[10:11]")
    mark(5)
    if stamps >= 100:
        if stamps % 2:
            a("  s_getreg_b32 s26, hwreg(HW_REG_XCC_ID, 0, 3)")
            a("  s_and_b32 s27, s2, 7")
            a("  s_cmp_eq_u32 s26, s27")
            a("  s_cbranch_scc1 L_done")
        a("L_hold:")
        a("  s_memrealtime s[42:43]")
        a("  s_waitcnt lgkmcnt(0)")
        a("  s_sub_u32 s42, s42, s40")
        a(f"  s_cmp_lt_u32 s42, {stamps * 100}")
        a("  s_cbranch_scc1 L_hold")
    if stamps == 2:
        a("  s_waitcnt vmcnt(0)")
        a("  s_memrealtime s[42:43]")
    if stamps == 3:
        a("  s_waitcnt vmcnt(0)")
        mark(7)
    if stamps and stamps < 100:
        a(f"  s_mul_i32 s30, s2, {nw}")
        a("  s_add_u32 s30, s30, s3")
        a("  s_lshl_b32 s26, s30, 5")
        a("  s_add_u32 s26, s26, 0x40000000")
        a("  s_add_u32 s14, s14, s26")
        a("  s_addc_u32 s15, s15, 0")
        a("  s_waitcnt lgkmcnt(0)")
        for i in range(4): a(f"  v_mov_b32 v{4+i}, s{40+i}")
        a("  v_mov_b32 v1, 0")
        a("  s_mov_b64 exec, 1")
        a("  global_store_dwordx4 v1, v[4:7], s[14:15]")
        a("  s_getreg_b32 s44, hwreg(HW_REG_XCC_ID)")
        a("  s_getreg_b32 s45, hwreg(HW_REG_HW_ID)")
        a("  v_mov_b32 v2, s44")
        a("  v_mov_b32 v3, s45")
        a("  global_store_dwordx2 v1, v[2:3], s[14:15] offset:16")
        if stamps == 4:
            a("  s_mov_b64 exec, -1")
            a("  s_mul_i32 s30, s30, 480")
            a("  s_add_u32 s30, s30, 0x100000")
            a("  s_add_u32 s14, s14, s30")
            a("  s_addc_u32 s15, s15, 0")
            a("  v_lshlrev_b32 v1, 2, v0")
            a(f"  global_store_dword v1, v{vTr}, s[14:15]")
            a(f"  global_store_dword v1, v{vTr+1}, s[14:15] offset:256")
        if stamps == 3:
            a("  s_add_u32 s14, s14, 0x100000")
            a("  s_addc_u32 s15, s15, 0")
            for i in range(8): a(f"  v_mov_b32 v{12+i}, s{50+2*i}")
            a("  global_store_dwordx4 v1, v[12:15], s[14:15]")
            a("  global_store_dwordx4 v1, v[16:19], s[14:15] offset:16")
    a("L_done:")
    a("  s_endpgm")
    L.extend(outl)

    cks = [int(x) for x in str(ck).split(".")]
    gps = [int(x) for x in str(gp).split(".")] if str(gp) else []
    assert len(gps) == len(cks) - 1 and len(cks) <= 7 and nrep in (64, 128)
    pack = lambda v: sum(x << (8 * i) for i, x in enumerate(v))
    ct = pack(cks + [0]); gt = pack(gps)
    GD = [int(x) for x in str(guard).split(".")] if str(guard) else []
    assert not GD or (fast and ref2 < 0 and sub == 1 and len(GD) <= 3)
    GOFF = 0xa8000
    TA = 64 + T0 + nt + 1
    assert bc + 1 < TA <= 127
    hG, hG2, hH, hH2 = 12, 13, 14, 15
    hU, hS, hR, hA, hT = 16, 28, 40, 52, 76
    def slot_loads(d, h, h2):
        a(f"  global_load_dwordx4 {r4(d)}, v{h}, s[14:15] {HF}")
        a(f"  global_load_dwordx4 {r4(d+4)}, v{h}, s[14:15] offset:1024 {HF}")
        a(f"  global_load_dwordx2 {r2(d+8)}, v{h2}, s[14:15] {HF}")
    def put_cw():
        a("  s_or_b32 s30, s29, s28")
        a("  v_mov_b32 v2, s30")
        a("  ds_write_b32 v1, v2")
    a("; ws: slots 2 KiB * workgroup | +512 KiB (m, l) lines | +576 KiB echo lines | +640 KiB announcements | +672 KiB guard line")
    a("L_helper:")
    duty()
    a(f"  v_mov_b32 v1, {CW}")
    a("  s_lshl_b32 s29, s38, 16")
    a("  s_mov_b32 s28, 0")
    put_cw()
    a("  s_lshl_b32 s26, s2, 11")
    a(f"  v_lshl_add_u32 v{hG}, v0, 4, s26")
    a(f"  v_xor_b32 v{hH}, 0x800, v{hG}")
    a("  s_lshl_b32 s27, s2, 7")
    a("  s_add_u32 s26, s27, 0x80000")
    a(f"  v_lshrrev_b32 v{hG2}, 4, v0")
    a(f"  v_lshl_add_u32 v{hG2}, v{hG2}, 3, s26")
    a(f"  v_xor_b32 v{hH2}, 0x80, v{hG2}")
    if spoll: a("  s_xor_b32 s34, s26, 0x80")
    a("  s_add_u32 s26, s27, 0x90000")
    a("  v_mov_b32 v6, s26")
    a("  v_xor_b32 v7, 0x80, v6")
    a("  s_mov_b32 s26, 0xa0000")
    a("  v_lshl_add_u32 v3, v0, 7, s26")
    if ref2 >= 0:
        a(f"  s_cmp_eq_u32 s2, {ref2}")
        a(f"  s_cselect_b32 s20, {roff:#x}, 0")
        a("  v_add_u32 v3, s20, v3")
    a("  v_add_u32 v4, 0x2000, v3")
    a(f"  s_and_b32 s20, s27, {(nrep - 1) * 128:#x}")
    a("  s_add_u32 s20, s20, s26")
    a(f"  s_mov_b32 s16, {ct & 0xffffffff:#x}")
    a(f"  s_mov_b32 s17, {ct >> 32:#x}")
    a(f"  s_mov_b32 s18, {gt & 0xffffffff:#x}            ; gains")
    a(f"  s_mov_b32 s19, {gt >> 32:#x}")
    a("  s_mov_b32 s24, 0")
    a("  s_mov_b32 s25, 0")
    a("  s_mov_b32 s32, 0")
    a("  s_mov_b32 s39, 0")
    a("  s_lshr_b32 s31, s2, 2")
    a(f"  s_add_u32 s31, s31, {be}")
    a("  s_waitcnt lgkmcnt(0)")
    a("  s_add_u32 s4, s14, s20")
    a("  s_addc_u32 s5, s15, 0")
    if spoll:
        a("  s_add_u32 s6, s14, s34")
        a("  s_addc_u32 s7, s15, 0")
    a("  s_load_dword s21, s[4:5], 0 glc")
    if ref2 >= 0: a(f"  s_load_dword s8, s[4:5], {roff:#x} glc")
    if lsnap:
        a("  s_waitcnt lgkmcnt(0)")
    slot_loads(hU, hG, hG2)
    slot_loads(hS, hH, hH2)
    a(f"  s_cmp_eq_u32 s2, {ref}")
    a("  s_cselect_b32 s33, 1, 0")
    if ref2 >= 0:
        a(f"  s_cmp_eq_u32 s2, {ref2}")
        a("  s_cselect_b32 s33, 1, s33")
        a("  s_mov_b64 s[10:11], s[16:17]")
        a("  s_cmp_eq_u32 s33, 1")
    a("  s_cbranch_scc0 L_hnot")
    if ref2 < 0 and not GD: a(f"  s_mov_b32 s32, {cks[-1] + (1 if fast else 2) + fm - rfm}")
    for i in range(len(GD)): a(f"  s_load_dword s{40+i}, s[14:15], {GOFF + 128 * i:#x} glc")
    a(f"  global_load_dword v5, v3, s[14:15] {HF}")
    if nrep > 64: a(f"  global_load_dword v11, v4, s[14:15] {HF}")
    a("L_hnot:")
    if GD:
        a("  ; guard: a workgroup on another die whose progress the announcer waits for before it reports")
        a("  s_mov_b64 s[10:11], 0")
        for i, g_ in enumerate(GD):
            a(f"  s_cmp_eq_u32 s2, {g_}")
            a(f"  s_cselect_b32 s26, {GOFF + 128 * i:#x}, {'s26' if i else 0}")
        a("  v_mov_b32 v86, s26")
        a("  s_cmp_eq_u32 s26, 0")
        a("  s_cbranch_scc1 L_hng")
        a("  s_mov_b64 s[10:11], s[16:17]")
        a(f"  global_load_dword v87, v86, s[14:15] {HF}")
        a("L_hng:")
    a("L_hloop:")
    a("  s_barrier")
    a("  s_add_u32 s24, s24, 1")
    a("  s_waitcnt vmcnt(0) lgkmcnt(0)")
    a("  s_mov_b64 exec, 1")
    a("  s_cmp_eq_u32 s24, 1")
    a("  s_cbranch_scc0 L_he1")
    if not fast: a("  s_mov_b32 s35, s21")
    a(f"  global_load_dword v8, v6, s[14:15] {HF}")
    a(f"  global_load_dword v9, v7, s[14:15] {HF}")
    a("L_he1:")
    a("  s_cmp_eq_u32 s24, s31")
    a("  s_cbranch_scc0 L_he2")
    if not noecho: a("  v_add_u32 v8, 1, v8")
    if noecho == 2:
        a("  s_and_b32 s30, s2, 1")
        a("  v_add_u32 v8, s30, v8")
    a(f"  global_store_dword v6, v8, s[14:15] {HF}")
    a("L_he2:")
    a(f"  s_cmp_eq_u32 s24, {bc}")
    a("  s_cbranch_scc0 L_he3")
    a(f"  global_load_dword v10, v7, s[14:15] {HF}")
    a("L_he3:")
    a(f"  s_cmp_eq_u32 s24, {bc + 1}")
    a("  s_cbranch_scc0 L_he4")
    a("  v_cmp_ne_u32 vcc, v9, v10")
    a("  s_mov_b32 s39, vcc_lo")
    a("L_he4:")
    if GD:
        a("  s_and_b32 s30, s10, 0xff")
        a(f"  s_sub_u32 s30, s30, {bl}")
        a("  s_cmp_eq_u32 s30, s24")
        a("  s_cbranch_scc0 L_he5")
        a("  v_add_u32 v87, 1, v87")
        a(f"  global_store_dword v86, v87, s[14:15] {HF}")
        a("  s_lshr_b64 s[10:11], s[10:11], 8")
        a("L_he5:")
    a("  s_mov_b64 exec, -1")
    a(f"  s_cmp_eq_u32 s24, {TA}")
    a("  s_cbranch_scc1 L_hpub")
    a("L_hpubd:")
    a("  s_cmp_eq_u32 s33, 1")
    a("  s_cbranch_scc1 L_href")
    a("L_hread:")
    a("  s_cmp_lg_u32 s32, 0")
    a("  s_cbranch_scc1 L_hwait")
    def look():
        a("  ; look only from shortly before the next announcement is due")
        a("  s_lshl_b32 s30, s25, 3")
        a("  s_lshr_b64 s[22:23], s[16:17], s30")
        a("  s_and_b32 s22, s22, 0xff")
        a(f"  s_add_u32 s23, s24, {pw}")
        a("  s_cmp_lt_u32 s23, s22")
        a("  s_cbranch_scc1 L_hnext")
        a("  s_load_dword s35, s[4:5], 0 glc")
        if ref2 >= 0: a(f"  s_load_dword s9, s[4:5], {roff:#x} glc")
    if fast:
        look()
        a("  s_waitcnt lgkmcnt(0)")
    a("  s_sub_u32 s30, s35, s21")
    if ref2 >= 0:
        assert fast
        a("  s_sub_u32 s9, s9, s8")
        a("  s_min_u32 s30, s30, s9")
    if sub > 1:
        assert fast and ref2 < 0
        for i in range(1, sub):
            a(f"  s_mov_b32 s9, {i - 1}")
            a("  s_cmp_eq_u32 s30, s25")
            a("  s_cbranch_scc0 L_hsaw0" if sl and i == 1 else "  s_cbranch_scc0 L_hsaw")
            if sl and i == 1:
                a(f"  s_cmp_lt_u32 s25, {len(cks) - sl}")
                a("  s_cbranch_scc1 L_hsame")
            a("  s_load_dword s35, s[4:5], 0 glc")
            a("  s_waitcnt lgkmcnt(0)")
            a("  s_sub_u32 s30, s35, s21")
        a(f"  s_mov_b32 s9, {sub - 1}")
    a("  s_cmp_eq_u32 s30, s25")
    a("  s_cbranch_scc1 L_hsame")
    if sub > 1 and sl:
        a("  s_branch L_hsaw")
        a("L_hsaw0:")
        a(f"  s_cmp_lt_u32 s25, {len(cks) - sl}")
        a(f"  s_cselect_b32 s9, {so}, s9")
    a("L_hsaw:")
    a(f"  s_min_u32 s25, s30, {len(cks)}")
    a("  s_lshl_b32 s30, s25, 3")
    a("  s_sub_u32 s30, s30, 8")
    a("  s_lshr_b64 s[22:23], s[16:17], s30")
    a("  s_and_b32 s22, s22, 0xff")
    a("  s_sub_i32 s22, s22, s24")
    a(f"  s_add_i32 s22, s22, {(0 if fast else 1) + lo}")
    a("L_hlate:")
    if sub > 1:
        a(f"  s_mul_i32 s22, s22, {sub}")
        a("  s_sub_i32 s22, s22, s9")
        if so: a(f"  s_add_i32 s22, s22, {so}")
    a(f"  s_cmp_eq_u32 s25, {len(cks)}")
    a("  s_cbranch_scc1 L_hfin")
    a("  s_lshr_b64 s[26:27], s[18:19], s30")
    a("  s_and_b32 s26, s26, 0xff")
    a("  s_mul_i32 s26, s26, s22")
    if gi:
        a(f"  s_mul_i32 s22, s22, {gi}")
        a("  s_add_i32 s38, s38, s22")
    a("  s_add_i32 s30, s38, s26")
    a(f"  s_max_i32 s30, s30, {umin}")
    a(f"  s_min_i32 s30, s30, {min(umax, (lev - 1) * 256)}")
    a("  s_lshl_b32 s29, s30, 16")
    put_cw()
    a("L_hsame:")
    if not fast: look()
    a("L_hnext:")
    a("  s_cmp_eq_u32 s24, 64")
    a("  s_cbranch_scc0 L_hnb")
    a("  s_barrier")
    a("L_hnb:")
    a("  s_cmp_lt_u32 s24, 127")
    a("  s_cbranch_scc1 L_hloop")
    a("  s_branch L_hget")
    a("L_hfin:")
    a(f"  s_mul_i32 s22, s22, {fk}")
    a("  s_ashr_i32 s22, s22, 1")
    a("  s_sub_i32 s32, s24, s22")
    a(f"  s_add_i32 s32, s32, {fm}")
    a("  s_max_i32 s32, s32, 1")
    a("L_hwait:")
    a("  s_cmp_lt_i32 s24, s32")
    a("  s_cbranch_scc1 L_hnext")
    a("  s_mov_b32 s28, 1")
    put_cw()
    a("  s_branch L_hnext")
    a("L_href:")
    if GD:
        a("  s_cmp_lg_u32 s32, 0")
        a("  s_cbranch_scc1 L_hwait")
        a("  s_lshl_b32 s30, s25, 3")
        a("  s_lshr_b64 s[22:23], s[16:17], s30")
        a("  s_and_b32 s22, s22, 0xff")
        a("  s_sub_i32 s22, s22, s24")
        a("  s_cmp_gt_i32 s22, 0")
        a("  s_cbranch_scc1 L_hnext")
        a(f"  s_cmp_le_i32 s22, {-gto}")
        a("  s_cbranch_scc1 L_hsay")
        for i in range(len(GD)): a(f"  s_load_dword s{44+i}, s[14:15], {GOFF + 128 * i:#x} glc")
        a("  s_waitcnt lgkmcnt(0)")
        for i in range(len(GD)):
            a(f"  s_sub_u32 s{44+i}, s{44+i}, s{40+i}")
            a(f"  s_cmp_gt_u32 s{44+i}, s25")
            a("  s_cbranch_scc0 L_hnext")
        a("L_hsay:")
        a("  v_add_u32 v5, 1, v5")
        a(f"  global_store_dword v3, v5, s[14:15] {HF}")
        if nrep > 64:
            a("  v_add_u32 v11, 1, v11")
            a(f"  global_store_dword v4, v11, s[14:15] {HF}")
        a("  s_add_u32 s25, s25, 1")
        a(f"  s_cmp_eq_u32 s25, {len(cks)}")
        a("  s_cbranch_scc0 L_hlate")
        a(f"  s_mul_i32 s22, s22, {fk}")
        a("  s_ashr_i32 s22, s22, 1")
        a("  s_sub_i32 s32, s24, s22")
        a(f"  s_add_i32 s32, s32, {1 + fm - rfm}")
        a("  s_branch L_hwait")
    if not GD:
        tb, nxt = ("s[10:11]", "L_hread") if ref2 >= 0 else ("s[16:17]", "L_hwait")
        a(f"  s_and_b32 s30, {'s10' if ref2 >= 0 else 's16'}, 0xff")
        a("  s_cmp_eq_u32 s30, s24")
        a(f"  s_cbranch_scc0 {nxt}")
        a("  v_add_u32 v5, 1, v5")
        a(f"  global_store_dword v3, v5, s[14:15] {HF}")
        if nrep > 64:
            a("  v_add_u32 v11, 1, v11")
            a(f"  global_store_dword v4, v11, s[14:15] {HF}")
        a(f"  s_lshr_b64 {tb}, {tb}, 8")
        a(f"  s_branch {'L_hnext' if ref2 >= 0 else nxt}")
    a("L_hpub:")
    a("  v_lshlrev_b32 v2, 5, v0")
    a(f"  ds_read_b128 {r4(hA)}, v2 offset:{DX}")
    a(f"  ds_read_b128 {r4(hA+4)}, v2 offset:{DX + 16}")
    a(f"  ds_read_b128 {r4(hA+12)}, v2 offset:{DX + 2048}")
    a(f"  ds_read_b128 {r4(hA+16)}, v2 offset:{DX + 2048 + 16}")
    a("  v_lshrrev_b32 v2, 4, v0")
    a("  v_lshlrev_b32 v2, 5, v2")
    a(f"  ds_read_b64 {r2(hA+8)}, v2 offset:{DL}")
    a(f"  ds_read_b64 {r2(hA+20)}, v2 offset:{DL + 512}")
    if not notag:
        for i in range(10): a(f"  v_not_b32 v{hU+i}, v{hU+i}")
    a("  s_waitcnt lgkmcnt(0)")
    for i in list(range(8)) + [9]: a(f"  v_add_f32 v{hA+i}, v{hA+i}, v{hA+12+i}")
    for i in range(10): a(f"  v_bfi_b32 v{hU+i}, 1, v{hU+i}, v{hA+i}")
    if not nohand:
        a(f"  global_store_dwordx4 v{hG}, {r4(hU)}, s[14:15] {HF}")
        a(f"  global_store_dwordx4 v{hG}, {r4(hU+4)}, s[14:15] offset:1024 {HF}")
        a("  s_mov_b32 exec_lo, 0x00010001")
        a("  s_mov_b32 exec_hi, 0x00010001")
        a(f"  global_store_dwordx2 v{hG2}, {r2(hU+8)}, s[14:15] {HF}")
        a("  s_mov_b64 exec, -1")
    a("  s_branch L_hpubd")
    a("L_hget:")
    if spoll: a(f"  v_readfirstlane_b32 s21, v{hS+8}")
    a("  s_xor_b32 s26, s2, 1")
    a("  v_mov_b32 v9, s26")
    a("  s_mov_b32 s25, 0")
    if nohand: a("  s_branch L_hhave")
    a("  s_cmp_lg_u32 s39, 0")
    a("  s_cbranch_scc1 L_hpoll")
    a("  v_mov_b32 v8, s2")
    a("  v_mov_b32 v10, 1")
    a("  s_waitcnt vmcnt(0)")
    a("  s_mov_b64 exec, 1")
    a(f"  global_store_byte v8, v10, s[12:13] {HF}")
    a("  s_mov_b64 exec, -1")
    a("L_hpoll:")
    a("  s_add_u32 s25, s25, 1")
    a("  s_bitcmp1_b32 s25, 23")
    a("  s_cbranch_scc1 L_hhave")
    a("  s_cmp_lg_u32 s39, 0")
    a("  s_cbranch_scc1 L_htag")
    a(f"  global_load_ubyte v{hT}, v9, s[12:13] {HF}")
    a("  s_waitcnt vmcnt(0)")
    a(f"  v_cmp_ne_u32 vcc, 0, v{hT}")
    a("  s_cbranch_vccz L_htag")
    slot_loads(hR, hH, hH2)
    a("  s_waitcnt vmcnt(0)")
    a("  s_branch L_hhave")
    a("L_htag:")
    if spoll:
        a("  s_load_dword s35, s[6:7], 0 glc")
        a("  s_waitcnt lgkmcnt(0)")
        a("  s_xor_b32 s35, s35, s21")
        a("  s_bitcmp1_b32 s35, 0")
        a("  s_cbranch_scc0 L_hpoll")
    slot_loads(hR, hH, hH2)
    a("  s_waitcnt vmcnt(0)")
    for i in range(10): a(f"  v_xor_b32 v{hT+i}, v{hR+i}, v{hS+i}")
    for i in range(5): a(f"  v_and_b32 v{hT+i}, v{hT+i}, v{hT+5+i}")
    a(f"  v_and_b32 v{hT}, v{hT}, v{hT+1}")
    a(f"  v_and_b32 v{hT+2}, v{hT+2}, v{hT+3}")
    a(f"  v_and_b32 v{hT}, v{hT}, v{hT+4}")
    a(f"  v_and_b32 v{hT}, v{hT}, v{hT+2}")
    a(f"  v_and_b32 v{hT}, 1, v{hT}")
    a(f"  v_cmp_eq_u32 vcc, 0, v{hT}")
    a("  s_cbranch_vccnz L_hpoll")
    a("L_hhave:")
    for i in range(10): a(f"  v_and_b32 v{hR+i}, -2, v{hR+i}")
    mo, lo_, mr, lr = hA + 8, hA + 9, hR + 8, hR + 9
    a(f"  v_min_f32 v2, v{mo}, v{mr}")
    a(f"  v_sub_f32 v{mo}, v2, v{mo}")
    a(f"  v_sub_f32 v{mr}, v2, v{mr}")
    a(f"  v_exp_f32 v{mo}, v{mo}")
    a(f"  v_exp_f32 v{mr}, v{mr}")
    a("  v_lshlrev_b32 v3, 5, v0")
    a(f"  v_mul_f32 v2, v{mo}, v{lo_}")
    a(f"  v_fmac_f32 v2, v{mr}, v{lr}")
    a("  v_rcp_f32 v2, v2")
    a("  v_lshlrev_b32 v4, 2, v0")
    a(f"  v_mul_f32 v{mo}, v{mo}, v2")
    a(f"  v_mul_f32 v{mr}, v{mr}, v2")
    for i in range(8): a(f"  v_mul_f32 v{hR+i}, v{mr}, v{hR+i}")
    a(f"  ds_write_b32 v4, v{mo} offset:{FA}")
    a(f"  ds_write_b128 v3, {r4(hR)} offset:{ZA}")
    a(f"  ds_write_b128 v3, {r4(hR+4)} offset:{ZA + 16}")
    a("  s_waitcnt lgkmcnt(0)")
    a("  s_barrier")
    a("  s_endpgm")
    nv4 = (nv + 3) // 4 * 4
    a(f""".section .rodata,"a"
.p2align 6
.amdhsa_kernel {KNAME}
  .amdhsa_next_free_vgpr {nv4}
  .amdhsa_next_free_sgpr {72 if stamps else 48}
  .amdhsa_accum_offset {nv4}
  .amdhsa_group_segment_fixed_size 0
  .amdhsa_kernarg_size 48
  .amdhsa_user_sgpr_count 2
  .amdhsa_user_sgpr_kernarg_segment_ptr 1
  .amdhsa_system_sgpr_workgroup_id_x 1
  .amdhsa_float_denorm_mode_32 3
.end_amdhsa_kernel""")
    return HEADER + "\n".join(L) + "\n"

def parse(spec):
    kw = {}
    for kv in spec.split(","):
        k_, v_ = kv.split("=")
        if k_ == 'flags': v_ = '' if v_ == 'none' else v_.replace("+", " ")
        elif k_ not in ('order', 'cm', 'hm', 'ck', 'gp', 'wx', 'guard') and v_.lstrip("-").isdigit(): v_ = int(v_)
        kw[k_] = v_
    return kw
if __name__ == "__main__":
    for spec in sys.argv[1:]:
        name = "k14_" + spec.replace(",", "_").replace("=", "").replace("+", "")[:80] + ".s"
        open(name, "w").write(gen(**parse(spec))); print(name)
```
